```python
import torch

def _softmax(x, axis=-1):
    return torch.softmax(x, dim=axis)

def _gelu(x):
    return torch.nn.functional.gelu(x, approximate='tanh')

def _silu(x):
    return torch.nn.functional.silu(x)

def _sigmoid(x):
    return torch.sigmoid(x)

def _layernorm(x, axis=-1, eps=1e-05):
    m = x.mean(dim=axis, keepdim=True)
    v = x.var(dim=axis, keepdim=True, unbiased=False)
    return (x - m) / torch.sqrt(v + eps)

def _scatter_add(tgt, idx, src, axis=0):
    return tgt.clone().index_add_(axis, idx, src)

def _segment_sum(src, seg, n):
    out = torch.zeros((n,) + src.shape[1:], dtype=src.dtype)
    return out.index_add_(0, seg, src)

def _pad(x, pw):
    flat = tuple((v for pair in reversed(pw) for v in pair))
    return torch.nn.functional.pad(x, flat)
kernel_name = 'parallel_sum__grouped_kv_mqa__mixer_gmlp__prompt'

def setup_inputs():

    _w = lambda a: (lambda t: t.to(torch.bfloat16) if t.is_floating_point() else t)(torch.as_tensor(a))

    def _A_setup():
        B, S, D, H = (1, 2048, 512, 32)
        Dh = D // H
        return {'x': _w((lambda *s: torch.randn(*s, dtype=torch.bfloat16) * 0.05)(B, S, D)), 'wq': _w((lambda *s: torch.randn(*s, dtype=torch.bfloat16) * 0.1)(D, H * Dh)), 'wk': _w((lambda *s: torch.randn(*s, dtype=torch.bfloat16) * 0.1)(D, Dh)), 'wv': _w((lambda *s: torch.randn(*s, dtype=torch.bfloat16) * 0.05)(D, Dh)), 'wo': _w((lambda *s: torch.randn(*s, dtype=torch.bfloat16) * 0.05)(H * Dh, D))}
    _A_in = _A_setup()

    def _B_setup():
        B, S, D, F = (1, 2048, 512, 1792)
        Fh = F // 2
        return {'x': _w((lambda *s: torch.randn(*s, dtype=torch.bfloat16) * 0.05)(B, S, D)), 'w_in': _w((lambda *s: torch.randn(*s, dtype=torch.bfloat16) * 0.2)(D, 2 * Fh)), 'w_sp': _w(0.01 * (lambda *s: torch.randn(*s, dtype=torch.bfloat16) * 0.2)(S, S)), 'b_sp': _w(1.0 + 0.01 * (lambda *s: torch.randn(*s, dtype=torch.bfloat16) * 0.05)(S)), 'w_out': _w((lambda *s: torch.randn(*s, dtype=torch.bfloat16) * 0.05)(Fh, D))}
    _B_in = _B_setup()
    return {'A_x': _A_in['x'], 'A_wq': _A_in['wq'], 'A_wk': _A_in['wk'], 'A_wv': _A_in['wv'], 'A_wo': _A_in['wo'], 'B_x': _B_in['x'], 'B_w_in': _B_in['w_in'], 'B_w_sp': _B_in['w_sp'], 'B_b_sp': _B_in['b_sp'], 'B_w_out': _B_in['w_out']}

def reference(A_x, A_wq, A_wk, A_wv, A_wo, B_x, B_w_in, B_w_sp, B_b_sp, B_w_out):

    def _A_ref(x, wq, wk, wv, wo):
        B, S, D = x.shape
        H = 32
        Dh = D // H
        q = (lambda x, *d: x.permute(*d))((x @ wq).reshape(B, S, H, Dh), 0, 2, 1, 3)
        k = x @ wk
        v = x @ wv
        scores = torch.einsum('bhqd,bkd->bhqk', q, k) * Dh ** (-0.5)
        p = _softmax(scores, axis=-1)
        o = torch.einsum('bhqk,bkd->bhqd', p, v)
        return (lambda x, *d: x.permute(*d))(o, 0, 2, 1, 3).reshape(B, S, H * Dh) @ wo

    def _B_ref(x, w_in, w_sp, b_sp, w_out):
        B, S, D = x.shape
        F = w_in.shape[-1]
        Fh = F // 2
        z = _gelu(torch.einsum('bsd,df->bsf', x, w_in))
        z1 = z[..., :Fh].clone()
        z2 = _layernorm(z[..., Fh:], axis=-1)
        g = torch.einsum('ts,bsf->btf', w_sp, z2) + b_sp[None, :, None]
        return torch.einsum('bsf,fd->bsd', z1 * g, w_out)
    x = A_x
    xn = _layernorm(x, axis=-1)
    return x + _A_ref(xn, A_wq, A_wk, A_wv, A_wo) + _B_ref(xn, B_w_in, B_w_sp, B_b_sp, B_w_out)
```

```python
class Asm:
    def __init__(self):
        self.L = []
        self.uid = 0
    def e(self, *xs):
        for x in xs:
            if isinstance(x, (list, tuple)):
                self.e(*x)
            else:
                for l in x.split("\n"):
                    l = l.strip()
                    if l: self.L.append(l)
    def label(self, name): self.L.append(name + ":")
    def new(self, base):
        self.uid += 1
        return f"{base}_{self.uid}"
    def text(self):
        return "\n".join(l if l.endswith(":") else "    " + l for l in self.L) + "\n"

def v(i): return f"v{i}"
def vr(b, n): return f"v[{b}:{b+n-1}]" if n > 1 else f"v{b}"
def a(i): return f"a{i}"
def ar(b, n): return f"a[{b}:{b+n-1}]" if n > 1 else f"a{b}"
def s(i): return f"s{i}"
def sr(b, n): return f"s[{b}:{b+n-1}]" if n > 1 else f"s{b}"

def mfma32(d, A, B, C):
    return f"v_mfma_f32_32x32x16_bf16 {d}, {A}, {B}, {C}"

def srd(dst, ptr, nbytes):
    return [f"s_mov_b32 s{dst}, s{ptr}", f"s_mov_b32 s{dst+1}, s{ptr+1}", f"s_mov_b32 s{dst+2}, {nbytes}", f"s_mov_b32 s{dst+3}, 0x00020000"]

def nops(n):
    out = []
    while n > 0:
        k = min(n, 16)
        out.append(f"s_nop {k-1}")
        n -= k
    return out

KD = """
.section .rodata,"a"
.p2align 6
.amdhsa_kernel {name}
  .amdhsa_next_free_vgpr {vgpr}
  .amdhsa_next_free_sgpr {sgpr}
  .amdhsa_accum_offset {acc}
  .amdhsa_group_segment_fixed_size 0
  .amdhsa_kernarg_size 104
  .amdhsa_user_sgpr_count 2
  .amdhsa_user_sgpr_kernarg_segment_ptr 1
  .amdhsa_system_sgpr_workgroup_id_x 1
  .amdhsa_float_denorm_mode_32 3
  .amdhsa_float_denorm_mode_16_64 3
.end_amdhsa_kernel
"""
def kernel_head(name):
    return f".text\n.globl {name}\n.p2align 8\n.type {name},@function\n{name}:\n"

WS_QF  = 0x000000
WS_KF  = 0x200000
WS_VF  = 0x210000
WS_NRM = 0x220000
WS_FLG = 0x221000
WS_ST  = 0x230000
WS_Z1  = 0x280000
WS_Z2R = 0x600000
WS_Z2N = 0x980000
WS_ACT = 0xD00000
WS_END = 0xD00000 + 64*88*1024
```

```python
from asmlib import *

SLOT = 36864
LDS_STATS = 147456
LDS_CS = LDS_STATS + 1024
C1 = -2.0 * 1.4426950408889634 * 0.7978845608028654
C3 = C1 * 0.044715
QSCALE = 0.25 * 1.4426950408889634

import struct
def fbits(x): return "0x%08x" % struct.unpack("<I", struct.pack("<f", x))[0]

def gelu_block(A, acc, T, vr_r, sC3, vC1):
    P = range(8)
    for p in P: A.e(f"v_pk_mul_f32 {vr(acc+2*p,2)}, {vr(acc+2*p,2)}, {vr(vr_r,2)} op_sel_hi:[1,0]")
    for p in P: A.e(f"v_pk_mul_f32 {vr(T+2*p,2)}, {vr(acc+2*p,2)}, {vr(acc+2*p,2)}")
    for p in P: A.e(f"v_pk_fma_f32 {vr(T+2*p,2)}, {vr(T+2*p,2)}, {sr(sC3,2)}, {vr(vC1,2)}")
    for p in P: A.e(f"v_pk_mul_f32 {vr(T+2*p,2)}, {vr(T+2*p,2)}, {vr(acc+2*p,2)}")
    for i in range(16): A.e(f"v_exp_f32 v{T+i}, v{T+i}")
    for p in P: A.e(f"v_pk_add_f32 {vr(T+2*p,2)}, {vr(T+2*p,2)}, 1.0 op_sel_hi:[1,0]")
    for i in range(16): A.e(f"v_rcp_f32 v{T+i}, v{T+i}")
    for p in P: A.e(f"v_pk_mul_f32 {vr(acc+2*p,2)}, {vr(acc+2*p,2)}, {vr(T+2*p,2)}")

def gen_p1(name):
    A = Asm(); e = A.e
    sX, sWQ, sWK, sWV, sWIN, sWS = 4, 6, 8, 10, 12, 14
    SRD_X, SRD_WS = 16, 20
    sI, sJ, sW, sTB, sROLE = 24, 25, 26, 27, 28
    sTMP = 29
    sC, sCUR, sNXT, sXOFF, sDST = 36, 37, 38, 39, 40
    sSTEP = 41
    sC3 = 44
    sTBG = 46
    sONES = 47
    sB = 48
    vLANE = 1
    vXO = [2, 3]
    vXB = [4, 5, 6, 7]
    vWB = [8, 9, 10, 11]
    vAX, vAW = 12, 13
    vT0, vT1 = 14, 15
    XF = [16, 20]
    WF = [[24 + 4*b for b in range(3)], [36 + 4*b for b in range(3)]]
    vCS = [48, 49, 50]
    vS1, vS2 = 51, 52
    vG = [54, 56, 58]
    vR = 60
    vMU = 62
    ACC = [64, 80, 96]
    TMP = 112
    vC1 = 128
    vCORB = 132
    vCORA = 136
    vST = 140
    vP = 144
    vTR = 152
    NV = 160

    e("s_cmp_ge_u32 s2, 256", f"s_cbranch_scc1 L_{name}_end")
    e(f"s_load_dwordx4 s[4:7], s[0:1], 0", f"s_load_dwordx4 s[8:11], s[0:1], 16", f"s_load_dwordx2 s[12:13], s[0:1], 48", f"s_load_dwordx2 s[14:15], s[0:1], 96")
    e(f"v_and_b32 v{vLANE}, 63, v0", f"v_lshrrev_b32 v{vT0}, 6, v0", "s_nop 0", f"v_readfirstlane_b32 s{sW}, v{vT0}")
    e(f"s_and_b32 s{sTMP}, s2, 7", f"s_lshr_b32 s{sTMP+1}, s2, 3",
      f"s_lshr_b32 s{sI}, s{sTMP}, 1", f"s_lshl_b32 s{sI}, s{sI}, 2", f"s_lshr_b32 s{sTMP+2}, s{sTMP+1}, 3", f"s_add_u32 s{sI}, s{sI}, s{sTMP+2}",
      f"s_and_b32 s{sJ}, s{sTMP}, 1", f"s_lshl_b32 s{sJ}, s{sJ}, 3", f"s_and_b32 s{sTMP+2}, s{sTMP+1}, 7", f"s_add_u32 s{sJ}, s{sJ}, s{sTMP+2}")
    e(f"s_and_b32 s{sTB}, s{sW}, 3", f"s_lshr_b32 s{sROLE}, s{sW}, 2")
    e(f"s_lshl_b32 s{sTBG}, s{sI}, 2", f"s_add_u32 s{sTBG}, s{sTBG}, s{sTB}")
    e(f"s_mov_b32 s{sONES}, 0x3f803f80", f"s_mov_b32 s{sC3}, {fbits(C3)}", f"s_mov_b32 s{sC3+1}, {fbits(C3)}")
    e(f"v_mov_b32 v{vC1}, {fbits(C1)}", f"v_mov_b32 v{vC1+1}, {fbits(C1)}")
    e(f"s_lshl_b32 s{sTMP}, s{sI}, 7", f"s_lshl_b32 s{sTMP+1}, s{sW}, 4", f"s_add_u32 s{sTMP}, s{sTMP}, s{sTMP+1}", f"s_lshl_b32 s{sTMP}, s{sTMP}, 10")
    for q in range(2):
        e(f"v_lshrrev_b32 v{vT0}, 4, v{vLANE}")
        if q: e(f"v_add_u32 v{vT0}, 4, v{vT0}")
        e(f"v_xor_b32 v{vT0}, v{vT0}, v{vLANE}", f"v_and_b32 v{vT0}, 7, v{vT0}", f"v_lshlrev_b32 v{vT0}, 4, v{vT0}",
          f"v_lshrrev_b32 v{vT1}, 3, v{vLANE}", f"v_lshlrev_b32 v{vT1}, 10, v{vT1}", f"v_add_u32 v{vT0}, v{vT0}, v{vT1}",
          f"v_add_u32 v{vXO[q]}, s{sTMP}, v{vT0}")
        if q: e(f"v_add_u32 v{vXO[q]}, 0x2000, v{vXO[q]}")
    e(f"v_and_b32 v{vT0}, 31, v{vLANE}", f"v_lshrrev_b32 v{vT1}, 1, v{vT0}", f"v_and_b32 v{vT1}, 7, v{vT1}",
      f"v_lshrrev_b32 v{vAX}, 5, v{vLANE}", f"v_xor_b32 v{vT1}, v{vT1}, v{vAX}", f"v_lshlrev_b32 v{vT1}, 4, v{vT1}",
      f"v_lshlrev_b32 v{vT0}, 7, v{vT0}", f"v_add_u32 v{vT0}, v{vT0}, v{vT1}", f"s_lshl_b32 s{sTMP}, s{sTB}, 12", f"v_add_u32 v{vT0}, s{sTMP}, v{vT0}")
    e(f"v_lshrrev_b32 v{vT1}, 5, v{vLANE}", f"v_lshlrev_b32 v{vT1}, 3, v{vT1}", f"v_bfe_u32 v{vAW}, v{vLANE}, 2, 2", f"v_add_u32 v{vT1}, v{vT1}, v{vAW}",
      f"v_lshlrev_b32 v{vT1}, 6, v{vT1}", f"v_bfe_u32 v{vAW}, v{vLANE}, 4, 1", f"v_lshlrev_b32 v{vAW}, 5, v{vAW}", f"v_add_u32 v{vT1}, v{vT1}, v{vAW}",
      f"v_and_b32 v{vAW}, 3, v{vLANE}", f"v_lshlrev_b32 v{vAW}, 3, v{vAW}", f"v_add_u32 v{vT1}, v{vT1}, v{vAW}", f"v_add_u32 v{vT1}, 0x4000, v{vT1}")
    for sp in range(4):
        e(f"s_add_u32 s{sTMP}, s{sTB}, {sp}", f"s_and_b32 s{sTMP}, s{sTMP}, 3", f"s_lshl_b32 s{sTMP+1}, s{sTMP}, 5", f"s_lshl_b32 s{sTMP+2}, s{sTMP}, 10",
          f"v_xor_b32 v{vXB[sp]}, s{sTMP+1}, v{vT0}", f"v_add_u32 v{vWB[sp]}, s{sTMP+2}, v{vT1}")
    for b in range(3):
        for i in range(16): e(f"v_mov_b32 v{ACC[b]+i}, 0")
        e(f"v_mov_b32 v{vCS[b]}, 0")
    e(f"v_mov_b32 v{vS1}, 0", f"v_mov_b32 v{vS2}, 0")
    e(f"v_lshlrev_b32 v{vT0}, 2, v0", f"v_add_u32 v{vT0}, {LDS_CS}, v{vT0}", f"v_mov_b32 v{vT1}, 0", f"v_cmp_gt_u32 vcc, 160, v0",
      f"s_and_saveexec_b64 s[30:31], vcc", f"s_cbranch_execz L_{name}_nz", f"ds_write_b32 v{vT0}, v{vT1}", f"L_{name}_nz:", "s_mov_b64 exec, s[30:31]")
    e("s_waitcnt lgkmcnt(0)")
    e(srd(SRD_X, sX, 2048*1024), srd(SRD_WS, sWS, WS_END))
    e(f"v_lshrrev_b32 v{vT0}, 2, v{vLANE}", f"s_lshl_b32 s{sTMP}, s{sTB}, 4", f"v_add_u32 v{vT0}, s{sTMP}, v{vT0}", f"v_and_b32 v{vT1}, 3, v{vLANE}", f"v_lshlrev_b32 v{vT1}, 4, v{vT1}")
    def blk_addr(b, ptr, coloff_s, stride):
        e(f"s_add_u32 s{sB}, s{ptr}, s{coloff_s}", f"s_addc_u32 s{sB+1}, s{ptr+1}, 0",
          f"s_mov_b32 s{sB+2}, {stride}", f"v_mul_lo_u32 v{vAX}, v{vT0}, s{sB+2}", f"v_add_u32 v{vAX}, v{vAX}, v{vT1}",
          f"v_mov_b32 v{vG[b]+1}, s{sB+1}", f"v_add_co_u32 v{vG[b]}, vcc, s{sB}, v{vAX}", f"v_addc_co_u32 v{vG[b]+1}, vcc, 0, v{vG[b]+1}, vcc",
          f"s_mov_b32 s{sSTEP+b}, {64*stride}")
    e(f"s_cmp_eq_u32 s{sROLE}, 0", f"s_cbranch_scc0 L_{name}_addrY")
    e(f"s_cmp_lt_u32 s{sJ}, 14", f"s_cselect_b32 s{sTMP}, s{sJ}, 0", f"s_lshl_b32 s{sTMP}, s{sTMP}, 7")
    blk_addr(0, sWIN, sTMP, 3584)
    e(f"s_add_u32 s{sTMP}, s{sTMP}, 64")
    blk_addr(1, sWIN, sTMP, 3584)
    e(f"s_lshl_b32 s{sTMP}, s{sJ}, 6")
    blk_addr(2, sWQ, sTMP, 1024)
    e(f"s_cmp_eq_u32 s{sJ}, 14", f"s_cbranch_scc0 L_{name}_addrDone")
    e(f"v_lshlrev_b32 v{vAX}, 5, v{vT0}", f"v_add_u32 v{vAX}, v{vAX}, v{vT1}",
      f"v_mov_b32 v{vAW}, s{sWK}", f"v_mov_b32 v{vG[0]+1}, s{sWK+1}",
      f"s_sub_u32 s{sB}, s{sWV}, 32", f"s_subb_u32 s{sB+1}, s{sWV+1}, 0",
      f"v_mov_b32 v{vG[0]}, s{sB}", f"v_mov_b32 v{TMP}, s{sB+1}",
      f"v_cmp_gt_u32 vcc, 32, v{vT1}", "s_nop 1",
      f"v_cndmask_b32 v{vAW}, v{vG[0]}, v{vAW}, vcc", f"v_cndmask_b32 v{vG[0]+1}, v{TMP}, v{vG[0]+1}, vcc",
      f"v_add_co_u32 v{vG[0]}, vcc, v{vAW}, v{vAX}", f"v_addc_co_u32 v{vG[0]+1}, vcc, 0, v{vG[0]+1}, vcc",
      f"s_mov_b32 s{sSTEP}, {64*32}")
    e(f"s_branch L_{name}_addrDone")
    A.label(f"L_{name}_addrY")
    e(f"s_cmp_lt_u32 s{sJ}, 14", f"s_cselect_b32 s{sTMP}, s{sJ}, 0", f"s_lshl_b32 s{sTMP}, s{sTMP}, 7", f"s_add_u32 s{sTMP}, s{sTMP}, 1792")
    blk_addr(0, sWIN, sTMP, 3584)
    e(f"s_add_u32 s{sTMP}, s{sTMP}, 64")
    blk_addr(1, sWIN, sTMP, 3584)
    e(f"v_mov_b32 v{vG[2]}, v{vG[1]}", f"v_mov_b32 v{vG[2]+1}, v{vG[1]+1}", f"s_mov_b32 s{sSTEP+2}, 0")
    A.label(f"L_{name}_addrDone")

    def dma_chunk(nb, blk0, slot_s):
        o = []
        o += [f"s_lshl_b32 s{sDST}, s{sW}, 11", f"s_add_u32 s{sDST}, s{sDST}, s{slot_s}"]
        for q in range(2):
            o += [f"s_add_u32 m0, s{sDST}, {q*1024}", "s_nop 0", f"buffer_load_dwordx4 v{vXO[q]}, s[{SRD_X}:{SRD_X+3}], s{sXOFF} offen lds"]
        o += [f"s_add_u32 s{sXOFF}, s{sXOFF}, 128"]
        o += [f"s_lshl_b32 s{sDST}, s{sTB}, 10", f"s_add_u32 s{sDST}, s{sDST}, s{slot_s}"]
        for b in range(nb):
            o += [f"s_add_u32 m0, s{sDST}, {16384 + (blk0+b)*4096}", "s_nop 0", f"global_load_lds_dwordx4 {vr(vG[b],2)}, off",
                  f"v_add_co_u32 v{vG[b]}, vcc, s{sSTEP+b}, v{vG[b]}", f"v_addc_co_u32 v{vG[b]+1}, vcc, 0, v{vG[b]+1}, vcc"]
        return o
    def reads(nb, blk0, sp, buf, slot_s):
        o = [f"v_add_u32 v{vAX}, s{slot_s}, v{vXB[sp]}", f"v_add_u32 v{vAW}, s{slot_s}, v{vWB[sp]}", f"ds_read_b128 {vr(XF[buf],4)}, v{vAX}"]
        for b in range(nb):
            o += [f"ds_read_b64_tr_b16 {vr(WF[buf][b],2)}, v{vAW} offset:{(blk0+b)*4096}", f"ds_read_b64_tr_b16 {vr(WF[buf][b]+2,2)}, v{vAW} offset:{(blk0+b)*4096+256}"]
        return o

    def main(role):
        nb = 3 if role == 0 else 2
        blk0 = 0 if role == 0 else 3
        n = 2 + nb
        L = f"L_{name}_r{role}"
        e(f"s_mov_b32 s{sXOFF}, 0")
        for c in range(3):
            e(f"s_mov_b32 s{sTMP}, {c*SLOT}")
            e(dma_chunk(nb, blk0, sTMP))
        e(f"s_waitcnt vmcnt({2*n})", "s_barrier")
        e(f"s_mov_b32 s{sC}, 0", f"s_mov_b32 s{sCUR}, 0", f"s_mov_b32 s{sNXT}, {SLOT}")
        e(reads(nb, blk0, 0, 0, sCUR))
        A.label(L)
        for sp in range(4):
            buf = sp % 2
            if sp == 2:
                e(f"s_cmp_eq_u32 s{sC}, 7", f"s_cbranch_scc1 {L}_nob",
                  f"s_cmp_eq_u32 s{sC}, 6", f"s_cbranch_scc1 {L}_w0",
                  f"s_waitcnt vmcnt({n})", f"s_branch {L}_bar", f"{L}_w0:", "s_waitcnt vmcnt(0)", f"{L}_bar:", "s_barrier",
                  f"s_cmp_gt_u32 s{sC}, 4", f"s_cbranch_scc1 {L}_nob",
                  f"s_add_u32 s{sTMP}, s{sC}, 3", f"s_and_b32 s{sTMP}, s{sTMP}, 3", f"s_mul_i32 s{sTMP}, s{sTMP}, {SLOT}")
                e(dma_chunk(nb, blk0, sTMP))
                e(f"{L}_nob:")
            if sp < 3: e(reads(nb, blk0, sp+1, 1-buf, sCUR))
            else: e(reads(nb, blk0, 0, 1-buf, sNXT))
            e(f"s_waitcnt lgkmcnt({1+2*nb})")
            for b in range(nb):
                e(mfma32(vr(ACC[b],16), vr(WF[buf][b],4), vr(XF[buf],4), vr(ACC[b],16)))
                if sp == 0:
                    for i in range(4): e(f"v_dot2c_f32_bf16 v{vCS[b]}, s{sONES}, v{WF[buf][b]+i}")
                if role == 1 and b == 0:
                    for i in range(4): e(f"v_dot2c_f32_bf16 v{vS1}, s{sONES}, v{XF[buf]+i}", f"v_dot2c_f32_bf16 v{vS2}, v{XF[buf]+i}, v{XF[buf]+i}")
        e(f"s_add_u32 s{sC}, s{sC}, 1", f"s_mov_b32 s{sCUR}, s{sNXT}", f"s_add_u32 s{sTMP}, s{sC}, 1", f"s_and_b32 s{sTMP}, s{sTMP}, 3", f"s_mul_i32 s{sNXT}, s{sTMP}, {SLOT}",
          f"s_cmp_lt_u32 s{sC}, 8", f"s_cbranch_scc1 {L}")
        e("s_waitcnt lgkmcnt(0)")
        e(f"v_and_b32 v{vT0}, 31, v{vLANE}", f"v_lshlrev_b32 v{vT0}, 2, v{vT0}", f"v_add_u32 v{vT0}, {LDS_CS + blk0*128}, v{vT0}")
        for b in range(nb): e(f"ds_add_f32 v{vT0}, v{vCS[b]} offset:{b*128}")
        if role == 1:
            for S in (vS1, vS2):
                e(f"v_mov_b32 v{vT1}, v{S}", "s_nop 1", f"v_permlane32_swap_b32 v{vT1}, v{S}", "s_nop 1", f"v_add_f32 v{S}, v{S}, v{vT1}")
            e(f"v_mul_f32 v{vMU}, {fbits(1/512)}, v{vS1}", f"v_mul_f32 v{vS2}, {fbits(1/512)}, v{vS2}",
              f"v_fma_f32 v{vS2}, -v{vMU}, v{vMU}, v{vS2}", f"v_max_f32 v{vS2}, 0, v{vS2}", f"v_add_f32 v{vS2}, {fbits(1e-5)}, v{vS2}",
              f"v_rsq_f32 v{vMU+1}, v{vS2}",
              f"v_and_b32 v{vT1}, 31, v{vLANE}", f"s_lshl_b32 s{sTMP}, s{sTB}, 5", f"v_add_u32 v{vT1}, s{sTMP}, v{vT1}", f"v_lshlrev_b32 v{vT1}, 3, v{vT1}",
              f"v_add_u32 v{vT1}, {LDS_STATS}, v{vT1}", f"ds_write_b64 v{vT1}, {vr(vMU,2)}")
        e("s_waitcnt lgkmcnt(0)", "s_barrier")
        e(f"v_and_b32 v{vT1}, 31, v{vLANE}", f"s_lshl_b32 s{sTMP}, s{sTB}, 5", f"v_add_u32 v{vT1}, s{sTMP}, v{vT1}", f"v_lshlrev_b32 v{vT1}, 3, v{vT1}",
          f"v_add_u32 v{vT1}, {LDS_STATS}, v{vT1}", f"ds_read_b64 {vr(vMU,2)}, v{vT1}")
        for b in range(nb): e(f"ds_read_b32 v{vCS[b]}, v{vT0} offset:{b*128}")
        e("s_waitcnt lgkmcnt(0)")
        e(f"v_mov_b32 v{vR}, v{vMU+1}")
        e(f"v_cmp_gt_u32 vcc, 32, v{vLANE}",
          f"v_sub_f32 v{vT0}, 0, v{vMU}", f"v_cvt_pk_bf16_f32 v{vCORB}, v{vT0}, v{vT0}", f"v_and_b32 v{vT1}, 0xffff0000, v{vCORB}", f"v_sub_f32 v{vT1}, v{vT0}, v{vT1}",
          f"v_cvt_pk_bf16_f32 v{vCORB+1}, v{vT1}, 0",
          f"v_cndmask_b32 v{vCORB}, 0, v{vCORB}, vcc", f"v_cndmask_b32 v{vCORB+1}, 0, v{vCORB+1}, vcc", f"v_mov_b32 v{vCORB+2}, 0", f"v_mov_b32 v{vCORB+3}, 0",
          f"v_mov_b32 v{vCORA+2}, 0", f"v_mov_b32 v{vCORA+3}, 0")
        for b in range(nb):
            e(f"v_cvt_pk_bf16_f32 v{vCORA+1}, v{vCS[b]}, 0", f"v_lshlrev_b32 v{vT0}, 16, v{vCORA+1}", f"v_sub_f32 v{vT0}, v{vCS[b]}, v{vT0}",
              f"v_cvt_pk_bf16_f32 v{vCORA}, v{vCS[b]}, v{vT0}",
              f"v_cndmask_b32 v{vCORA}, 0, v{vCORA}, vcc", f"v_cndmask_b32 v{vCORA+1}, 0, v{vCORA+1}, vcc", "s_nop 1",
              mfma32(vr(ACC[b],16), vr(vCORA,4), vr(vCORB,4), vr(ACC[b],16)), "s_nop 3")
        e(nops(14))
        laneoff = lambda: [f"v_lshlrev_b32 v{vST}, 4, v{vLANE}"]
        def pack8(acc):
            for p in range(8): e(f"v_cvt_pk_bf16_f32 v{vP+p}, v{acc+2*p}, v{acc+2*p+1}")
        def z1_epi(b, fb_expr_s):
            gelu_block(A, ACC[b], TMP, vR, sC3, vC1)
            pack8(ACC[b])
            e(f"s_mul_i32 s{sTMP}, s{sTBG}, 28", f"s_add_u32 s{sTMP}, s{sTMP}, s{fb_expr_s}", f"s_lshl_b32 s{sTMP}, s{sTMP}, 11", f"s_add_u32 s{sTMP}, s{sTMP}, {WS_Z1}")
            e(laneoff())
            e(f"buffer_store_dwordx4 {vr(vP,4)}, v{vST}, s[{SRD_WS}:{SRD_WS+3}], s{sTMP} offen", f"buffer_store_dwordx4 {vr(vP+4,4)}, v{vST}, s[{SRD_WS}:{SRD_WS+3}], s{sTMP} offen offset:1024")
        if role == 0:
            b = 2
            e(f"v_mul_f32 v{vR+1}, {fbits(QSCALE)}, v{vR}")
            for p in range(8): e(f"v_pk_mul_f32 {vr(ACC[b]+2*p,2)}, {vr(ACC[b]+2*p,2)}, {vr(vR,2)} op_sel:[0,1] op_sel_hi:[1,1]")
            pack8(ACC[b])
            e(f"s_lshl_b32 s{sTMP}, s{sTBG}, 5", f"s_lshl_b32 s{sTMP+1}, s{sJ}, 1", f"s_add_u32 s{sTMP}, s{sTMP}, s{sTMP+1}", f"s_lshl_b32 s{sTMP}, s{sTMP}, 10", f"s_add_u32 s{sTMP}, s{sTMP}, {WS_QF}")
            e(laneoff())
            e(f"buffer_store_dwordx4 {vr(vP,4)}, v{vST}, s[{SRD_WS}:{SRD_WS+3}], s{sTMP} offen", f"buffer_store_dwordx4 {vr(vP+4,4)}, v{vST}, s[{SRD_WS}:{SRD_WS+3}], s{sTMP} offen offset:1024")
            e(f"s_cmp_lt_u32 s{sJ}, 14", f"s_cbranch_scc0 L_{name}_notz1")
            e(f"s_lshl_b32 s{sTMP+3}, s{sJ}, 1")
            z1_epi(0, sTMP+3)
            e(f"s_add_u32 s{sTMP+3}, s{sTMP+3}, 1")
            z1_epi(1, sTMP+3)
            e(f"s_branch L_{name}_done")
            A.label(f"L_{name}_notz1")
            e(f"s_cmp_eq_u32 s{sJ}, 14", f"s_cbranch_scc0 L_{name}_done")
            b = 0; acc = ACC[0]
            for p in range(8): e(f"v_pk_mul_f32 {vr(acc+2*p,2)}, {vr(acc+2*p,2)}, {vr(vR,2)} op_sel_hi:[1,0]")
            e(f"v_mul_f32 v{vT0}, v{acc}, v{acc}")
            for i in range(1, 8): e(f"v_fma_f32 v{vT0}, v{acc+i}, v{acc+i}, v{vT0}")
            e(f"v_mov_b32 v{vT1}, v{vT0}", "s_nop 1", f"v_permlane32_swap_b32 v{vT1}, v{vT0}", "s_nop 1", f"v_add_f32 v{vT0}, v{vT0}, v{vT1}")
            e(f"v_max3_f32 v{vT1}, abs(v{acc+8}), abs(v{acc+9}), abs(v{acc+10})", f"v_max3_f32 v{vT1}, abs(v{acc+11}), abs(v{acc+12}), v{vT1}",
              f"v_max3_f32 v{vT1}, abs(v{acc+13}), abs(v{acc+14}), v{vT1}", f"v_max_f32 v{vT1}, abs(v{acc+15}), v{vT1}")
            for reg in (vT0, vT1):
                for sh in (8, 4, 2, 1):
                    e("s_nop 1", f"v_max_f32_dpp v{reg}, v{reg}, v{reg} row_ror:{sh} row_mask:0xf bank_mask:0xf")
                e(f"v_mov_b32 v{vAX}, v{reg}", "s_nop 1", f"v_permlane16_swap_b32 v{vAX}, v{reg}", "s_nop 1", f"v_max_f32 v{reg}, v{reg}, v{vAX}",
                  f"v_mov_b32 v{vAX}, v{reg}", "s_nop 1", f"v_permlane32_swap_b32 v{vAX}, v{reg}", "s_nop 1", f"v_max_f32 v{reg}, v{reg}, v{vAX}")
            e(f"s_lshl_b32 s{sTMP}, s{sTBG}, 2", f"s_add_u32 s{sTMP}, s{sTMP}, {WS_NRM}", f"v_mov_b32 v{vST}, 0",
              f"buffer_store_dword v{vT0}, v{vST}, s[{SRD_WS}:{SRD_WS+3}], s{sTMP} offen", f"buffer_store_dword v{vT1}, v{vST}, s[{SRD_WS}:{SRD_WS+3}], s{sTMP} offen offset:256")
            pack8(acc)
            e(f"s_lshl_b32 s{sTMP}, s{sTBG}, 10", f"s_add_u32 s{sTMP+1}, s{sTMP}, {WS_KF}")
            e(laneoff())
            e(f"buffer_store_dwordx4 {vr(vP,4)}, v{vST}, s[{SRD_WS}:{SRD_WS+3}], s{sTMP+1} offen")
            e(f"v_and_b32 v{vT0}, 31, v{vLANE}", f"v_mul_u32_u24 v{vT0}, 40, v{vT0}", f"v_lshrrev_b32 v{vT1}, 5, v{vLANE}", f"v_lshlrev_b32 v{vT1}, 3, v{vT1}",
              f"v_add_u32 v{vT0}, v{vT0}, v{vT1}", f"s_mul_i32 s{sTMP+2}, s{sW}, 2560", f"v_add_u32 v{vT0}, s{sTMP+2}, v{vT0}",
              f"ds_write_b64 v{vT0}, {vr(vP+4,2)}", f"ds_write_b64 v{vT0}, {vr(vP+6,2)} offset:16")
            e(f"v_bfe_u32 v{vT0}, v{vLANE}, 4, 1", f"v_lshlrev_b32 v{vT0}, 4, v{vT0}", f"v_lshrrev_b32 v{vT1}, 5, v{vLANE}", f"v_lshlrev_b32 v{vT1}, 2, v{vT1}", f"v_add_u32 v{vT0}, v{vT0}, v{vT1}",
              f"v_bfe_u32 v{vT1}, v{vLANE}, 2, 2", f"v_add_u32 v{vT0}, v{vT0}, v{vT1}", f"v_mul_u32_u24 v{vT0}, 40, v{vT0}", f"v_and_b32 v{vT1}, 3, v{vLANE}", f"v_lshlrev_b32 v{vT1}, 3, v{vT1}",
              f"v_add_u32 v{vT0}, v{vT0}, v{vT1}", f"v_add_u32 v{vT0}, s{sTMP+2}, v{vT0}",
              "s_waitcnt lgkmcnt(0)",
              f"ds_read_b64_tr_b16 {vr(vTR,2)}, v{vT0}", f"ds_read_b64_tr_b16 {vr(vTR+2,2)}, v{vT0} offset:320")
            e(f"v_bfe_u32 v{vST}, v{vLANE}, 4, 1", f"v_lshlrev_b32 v{vST}, 9, v{vST}", f"v_lshrrev_b32 v{vT1}, 5, v{vLANE}", f"v_lshlrev_b32 v{vT1}, 8, v{vT1}", f"v_add_u32 v{vST}, v{vST}, v{vT1}",
              f"v_and_b32 v{vT1}, 15, v{vLANE}", f"v_lshlrev_b32 v{vT1}, 4, v{vT1}", f"v_add_u32 v{vST}, v{vST}, v{vT1}",
              f"s_add_u32 s{sTMP+1}, s{sTMP}, {WS_VF}", "s_waitcnt lgkmcnt(0)",
              f"buffer_store_dwordx4 {vr(vTR,4)}, v{vST}, s[{SRD_WS}:{SRD_WS+3}], s{sTMP+1} offen")
            e(f"s_branch L_{name}_done")
        else:
            e(f"s_cmp_lt_u32 s{sJ}, 14", f"s_cbranch_scc0 L_{name}_noz2")
            e(f"v_mov_b32 v{vS1}, 0", f"v_mov_b32 v{vS2}, 0")
            vWR, vRD = vXB[0], vXB[1]
            e(f"v_and_b32 v{vWR}, 31, v{vLANE}", f"v_mul_u32_u24 v{vWR}, 72, v{vWR}", f"v_lshrrev_b32 v{vT1}, 5, v{vLANE}", f"v_lshlrev_b32 v{vT1}, 3, v{vT1}",
              f"v_add_u32 v{vWR}, v{vWR}, v{vT1}", f"s_mul_i32 s{sTMP+2}, s{sW}, 2560", f"v_add_u32 v{vWR}, s{sTMP+2}, v{vWR}")
            e(f"v_lshrrev_b32 v{vRD}, 5, v{vLANE}", f"v_lshlrev_b32 v{vRD}, 3, v{vRD}", f"v_bfe_u32 v{vT1}, v{vLANE}, 2, 2", f"v_add_u32 v{vRD}, v{vRD}, v{vT1}", f"v_mul_u32_u24 v{vRD}, 72, v{vRD}",
              f"v_bfe_u32 v{vT1}, v{vLANE}, 4, 1", f"v_lshlrev_b32 v{vT1}, 5, v{vT1}", f"v_add_u32 v{vRD}, v{vRD}, v{vT1}", f"v_and_b32 v{vT1}, 3, v{vLANE}", f"v_lshlrev_b32 v{vT1}, 3, v{vT1}",
              f"v_add_u32 v{vRD}, v{vRD}, v{vT1}", f"v_add_u32 v{vRD}, s{sTMP+2}, v{vRD}")
            for b in range(2):
                acc = ACC[b]
                gelu_block(A, acc, TMP, vR, sC3, vC1)
                for i in range(16): e(f"v_add_f32 v{vS1}, v{vS1}, v{acc+i}", f"v_fma_f32 v{vS2}, v{acc+i}, v{acc+i}, v{vS2}")
                pack8(acc)
                for g in range(4): e(f"ds_write_b64 v{vWR}, {vr(vP+2*g,2)} offset:{16*g}")
                e("s_waitcnt lgkmcnt(0)")
                for m in range(2):
                    e(f"ds_read_b64_tr_b16 {vr(vTR+4*m,2)}, v{vRD} offset:{m*16*72}", f"ds_read_b64_tr_b16 {vr(vTR+4*m+2,2)}, v{vRD} offset:{m*16*72+4*72}")
                e(f"s_lshl_b32 s{sTMP}, s{sTBG}, 1", f"s_mul_i32 s{sTMP}, s{sTMP}, 28", f"s_lshl_b32 s{sTMP+1}, s{sJ}, 1", f"s_add_u32 s{sTMP}, s{sTMP}, s{sTMP+1}", f"s_add_u32 s{sTMP}, s{sTMP}, {b}",
                  f"s_lshl_b32 s{sTMP}, s{sTMP}, 10", f"s_add_u32 s{sTMP}, s{sTMP}, {WS_Z2R}", f"s_add_u32 s{sTMP+1}, s{sTMP}, {28*1024}")
                e(laneoff())
                e("s_waitcnt lgkmcnt(0)")
                e(f"buffer_store_dwordx4 {vr(vTR,4)}, v{vST}, s[{SRD_WS}:{SRD_WS+3}], s{sTMP} offen", f"buffer_store_dwordx4 {vr(vTR+4,4)}, v{vST}, s[{SRD_WS}:{SRD_WS+3}], s{sTMP+1} offen")
                e("s_nop 1")
            e(f"s_branch L_{name}_st")
            A.label(f"L_{name}_noz2")
            e(f"v_mov_b32 v{vS1}, 0", f"v_mov_b32 v{vS2}, 0")
            e(f"s_cmp_eq_u32 s{sJ}, 15", f"s_cbranch_scc0 L_{name}_st", f"s_cmp_eq_u32 s{sI}, 0", f"s_cbranch_scc0 L_{name}_st")
            for i in range(4): e(f"v_mov_b32 v{vP+i}, 0")
            e(f"s_lshl_b32 s{sTMP}, s{sTB}, 10", f"s_add_u32 s{sTMP}, s{sTMP}, {WS_FLG}")
            e(laneoff())
            e(f"buffer_store_dwordx4 {vr(vP,4)}, v{vST}, s[{SRD_WS}:{SRD_WS+3}], s{sTMP} offen")
            A.label(f"L_{name}_st")
            for S in (vS1, vS2):
                e(f"v_mov_b32 v{vT1}, v{S}", "s_nop 1", f"v_permlane32_swap_b32 v{vT1}, v{S}", "s_nop 1", f"v_add_f32 v{S}, v{S}, v{vT1}")
            e(f"v_mov_b32 v{vP}, v{vS1}", f"v_mov_b32 v{vP+1}, v{vS2}",
              f"s_lshl_b32 s{sTMP}, s{sTBG}, 4", f"s_add_u32 s{sTMP}, s{sTMP}, s{sJ}", f"s_lshl_b32 s{sTMP}, s{sTMP}, 8", f"s_add_u32 s{sTMP}, s{sTMP}, {WS_ST}",
              f"v_and_b32 v{vST}, 31, v{vLANE}", f"v_lshlrev_b32 v{vST}, 3, v{vST}",
              f"buffer_store_dwordx2 {vr(vP,2)}, v{vST}, s[{SRD_WS}:{SRD_WS+3}], s{sTMP} offen")
            e(f"s_branch L_{name}_done")

    e(f"s_cmp_eq_u32 s{sROLE}, 0", f"s_cbranch_scc0 L_{name}_Y")
    main(0)
    A.label(f"L_{name}_Y")
    main(1)
    A.label(f"L_{name}_done")
    e("s_waitcnt vmcnt(0)")
    A.label(f"L_{name}_end")
    e("s_endpgm")
    txt = kernel_head(name) + A.text() + KD.format(name=name, vgpr=NV, sgpr=64, acc=NV)
    return txt
```

```python
from asmlib import *
import struct
def fbits(x): return "0x%08x" % struct.unpack("<I", struct.pack("<f", x))[0]

LDS_V = 65536
LDS_BOUNCE = 131072
XA_BASE = 0
XB_BASE = 32768
SPIN_MAX = 1 << 20

def wave_max(e, reg, tmp):
    for sh in (8, 4, 2, 1):
        e("s_nop 1", f"v_max_f32_dpp v{reg}, v{reg}, v{reg} row_ror:{sh} row_mask:0xf bank_mask:0xf")
    e(f"v_mov_b32 v{tmp}, v{reg}", "s_nop 1", f"v_permlane16_swap_b32 v{tmp}, v{reg}", "s_nop 1", f"v_max_f32 v{reg}, v{reg}, v{tmp}",
      f"v_mov_b32 v{tmp}, v{reg}", "s_nop 1", f"v_permlane32_swap_b32 v{tmp}, v{reg}", "s_nop 1", f"v_max_f32 v{reg}, v{reg}, v{tmp}")

def gen_p2(name, cfg=None):
    cfg = cfg or {}
    A = Asm(); e = A.e
    sWS, sWSP, sBSP = 4, 6, 8
    SRD_WS, SRD_WSP, SRD_BSP = 12, 16, 20
    sI, sJ, sW, sA = 24, 25, 26, 27
    sT = 28
    sCNT, sTBG, sQO = 36, 37, 38
    sLB = 39; sEX = 40; sZ, sWO, sT2 = 42, 43, 44
    sKAP = 45
    WSR = f"s[{SRD_WS}:{SRD_WS+3}]"
    vLANE = 1; vT0, vT1, vT2, vT3 = 2, 3, 4, 5
    NV = 256
    e("s_cmp_ge_u32 s2, 256", f"s_cbranch_scc1 L_{name}_end")
    e("s_load_dwordx2 s[4:5], s[0:1], 96", "s_load_dwordx4 s[8:11], s[0:1], 56")
    e(f"v_and_b32 v{vLANE}, 63, v0", f"v_lshrrev_b32 v{vT0}, 6, v0", "s_nop 0", f"v_readfirstlane_b32 s{sW}, v{vT0}")
    e(f"s_and_b32 s{sT}, s2, 7", f"s_lshr_b32 s{sT+1}, s2, 3", f"s_and_b32 s{sJ}, s{sT+1}, 7", f"s_lshr_b32 s{sI}, s{sT+1}, 3", f"s_lshl_b32 s{sI}, s{sI}, 3", f"s_add_u32 s{sI}, s{sI}, s{sT}")
    e(f"s_and_b32 s{sA}, s{sW}, 3", f"s_mov_b32 s{sEX}, 0x0000ffff", f"s_mov_b32 s{sEX+1}, 0x0000ffff")
    e("s_waitcnt lgkmcnt(0)")
    e(srd(SRD_WS, 4, WS_END), srd(SRD_WSP, 8, 2048*4096), srd(SRD_BSP, 10, 4096))
    def kv_fill():
        e(f"v_lshlrev_b32 v{vT0}, 4, v{vLANE}", f"s_lshl_b32 s{sT}, s{sW}, 14", f"s_add_u32 s{sT+1}, s{sT}, {WS_KF}")
        for n in range(16):
            e(f"s_add_u32 m0, s{sT}, {n*1024}", f"s_add_u32 s{sT+2}, s{sT+1}, {n*1024}", f"buffer_load_dwordx4 v{vT0}, {WSR}, s{sT+2} offen lds")
    e(f"s_cmp_ge_u32 s{sW}, 4", f"s_cbranch_scc1 L_{name}_B")

    Q = [8, 12, 16, 20]; O = [24, 40, 56, 72]; S = [88, 104]; K = [120, 124]; V = [128, 136]
    vKA, vVA = 6, 7
    vM = [144, 145, 146, 147]
    vX = 148
    e(f"s_and_b32 s{sT}, s{sA}, 1", f"s_lshr_b32 s{sKAP}, s{sA}, 1", f"s_lshl_b32 s{sTBG}, s{sI}, 1", f"s_add_u32 s{sTBG}, s{sTBG}, s{sT}")
    e(f"s_lshl_b32 s{sT}, s{sTBG}, 5", f"s_lshl_b32 s{sT+1}, s{sJ}, 2", f"s_add_u32 s{sT}, s{sT}, s{sT+1}", f"s_lshl_b32 s{sQO}, s{sT}, 10", f"s_add_u32 s{sT}, s{sQO}, {WS_QF}")
    e(f"v_lshlrev_b32 v{vT0}, 4, v{vLANE}")
    for q in range(4): e(f"buffer_load_dwordx4 {vr(Q[q],4)}, v{vT0}, {WSR}, s{sT} offen offset:{q*1024}")
    e(f"v_and_b32 v{vT1}, 31, v{vLANE}", f"v_lshlrev_b32 v{vT1}, 2, v{vT1}", f"s_lshl_b32 s{sT}, s{sKAP}, 7", f"s_add_u32 s{sT}, s{sT}, {WS_NRM}",
      f"buffer_load_dword v{vT2}, v{vT1}, {WSR}, s{sT} offen", f"buffer_load_dword v{vT3}, v{vT1}, {WSR}, s{sT} offen offset:256")
    kv_fill()
    for q in range(4):
        for i in range(16): e(f"v_mov_b32 v{O[q]+i}, 0")
        e(f"v_mov_b32 v{vM[q]}, 0")
    for i in range(16): e(f"v_mov_b32 v{S[1]+i}, 0")
    e(f"v_and_b32 v{vKA}, 31, v{vLANE}", f"v_cmp_eq_u32 vcc, 16, v{vKA}", f"v_mov_b32 v{vVA}, 0x3f803f80", "s_nop 0")
    for b in range(2):
        for i in range(8): e(f"v_cndmask_b32 v{V[b]+i}, 0, v{vVA}, vcc")
    e(f"s_lshl_b32 s{sT}, s{sKAP}, 15", f"v_lshlrev_b32 v{vKA}, 4, v{vLANE}", f"v_add_u32 v{vKA}, s{sT}, v{vKA}",
      f"v_and_b32 v{vVA}, 15, v{vLANE}", f"v_lshlrev_b32 v{vVA}, 4, v{vVA}", f"v_lshrrev_b32 v{vT0}, 5, v{vLANE}", f"v_lshlrev_b32 v{vT0}, 8, v{vT0}",
      f"v_add_u32 v{vVA}, v{vVA}, v{vT0}", f"s_add_u32 s{sT}, s{sT}, {LDS_V}", f"v_add_u32 v{vVA}, s{sT}, v{vVA}")
    e("s_waitcnt vmcnt(16)")
    e(f"v_mov_b32 v{vT0}, 0")
    for q in range(4):
        e(f"v_mov_b32 v{vT1}, 0")
        for i in range(4): e(f"v_dot2c_f32_bf16 v{vT1}, v{Q[q]+i}, v{Q[q]+i}")
        e(f"v_mov_b32 v{vX}, v{vT1}", "s_nop 1", f"v_permlane32_swap_b32 v{vX}, v{vT1}", "s_nop 1", f"v_add_f32 v{vT1}, v{vT1}, v{vX}", f"v_max_f32 v{vT0}, v{vT0}, v{vT1}")
    wave_max(e, vT0, vX); wave_max(e, vT2, vX); wave_max(e, vT3, vX)
    e(f"v_mul_f32 v{vT0}, v{vT0}, v{vT2}",
      f"v_cmp_ge_f32 vcc, {fbits(9800.0)}, v{vT0}", f"v_cmp_ge_f32 s[{sT}:{sT+1}], {fbits(32768.0).replace('0x47000000','0x47000000')}, v{vT3}" if False else "s_nop 0")
    e(f"v_mov_b32 v{vX}, {fbits(32768.0)}", f"v_cmp_ge_f32 s[{sT}:{sT+1}], v{vX}, v{vT3}", "s_nop 1", f"s_and_b64 vcc, vcc, s[{sT}:{sT+1}]")
    e(f"s_mov_b64 s[{sT+2}:{sT+3}], vcc")
    e("s_waitcnt vmcnt(0)", "s_barrier")
    e(f"s_cmp_eq_u64 s[{sT+2}:{sT+3}], exec", f"s_cbranch_scc0 L_{name}_slow")
    if cfg.get('force_slow'): e(f"s_branch L_{name}_slow")
    def kv_reads(b, kt_off):
        return [f"ds_read_b128 {vr(K[b],4)}, v{vKA} offset:{kt_off*1024}", f"s_mov_b64 exec, s[{sEX}:{sEX+1}]",
                f"ds_read_b128 {vr(V[b],4)}, v{vVA} offset:{kt_off*1024}", f"ds_read_b128 {vr(V[b]+4,4)}, v{vVA} offset:{kt_off*1024+512}", "s_mov_b64 exec, -1"]
    e(kv_reads(0, 0), "s_waitcnt lgkmcnt(0)")
    e(mfma32(vr(S[0],16), vr(K[0],4), vr(Q[0],4), "0"), nops(12))
    U = 16
    e(f"s_mov_b32 s{sCNT}, {128//U}")
    A.label(f"L_{name}_Af")
    for u in range(U):
        q = u % 4; ktl = u // 4; b = ktl % 2; cur = u % 2
        Sc = S[cur]; Sn = S[1-cur]
        qp = (q - 1) % 4; bp = b if q > 0 else 1 - b
        qn = (q + 1) % 4; bn = b if q < 3 else 1 - b
        E = lambda i: f"v_exp_f32 v{Sc+i}, v{Sc+i}"
        C = lambda i: f"v_cvt_pk_bf16_f32 v{Sc+i}, v{Sc+2*i}, v{Sc+2*i+1}"
        e(E(0), E(1))
        e(mfma32(vr(O[qp],16), vr(V[bp]+4,4), vr(Sn+4,4), vr(O[qp],16)))
        e(E(2), E(3))
        if q == 3: e("s_waitcnt lgkmcnt(0)")
        e(E(4))
        e(mfma32(vr(Sn,16), vr(K[bn],4), vr(Q[qn],4), "0"))
        if q == 1: e(kv_reads(1-b, ktl+1))
        e(E(5), E(6), E(7), C(0), C(1), C(2), C(3), E(8), E(9))
        e(mfma32(vr(O[q],16), vr(V[b],4), vr(Sc,4), vr(O[q],16)))
        e([E(i) for i in range(10, 16)], [C(i) for i in range(4, 8)])
    e(f"v_add_u32 v{vKA}, {U//4*1024}, v{vKA}", f"v_add_u32 v{vVA}, {U//4*1024}, v{vVA}")
    e(f"s_sub_u32 s{sCNT}, s{sCNT}, 1", f"s_cmp_lg_u32 s{sCNT}, 0", f"s_cbranch_scc1 L_{name}_Af")
    e("s_nop 1", mfma32(vr(O[3],16), vr(V[1]+4,4), vr(S[1]+4,4), vr(O[3],16)))
    e(f"s_branch L_{name}_Acomb")
    A.label(f"L_{name}_slow")
    for q in range(4): e(f"v_mov_b32 v{vM[q]}, {fbits(-1e30)}")
    e(f"s_mov_b32 s{sCNT}, 32")
    A.label(f"L_{name}_As")
    e(kv_reads(0, 0), "s_waitcnt lgkmcnt(0)")
    for q in range(4):
        Sc = S[0]
        e(mfma32(vr(Sc,16), vr(K[0],4), vr(Q[q],4), "0"), nops(14))
        e(f"v_max3_f32 v{vT0}, v{Sc}, v{Sc+1}, v{Sc+2}")
        for i in range(3, 15, 2): e(f"v_max3_f32 v{vT0}, v{Sc+i}, v{Sc+i+1}, v{vT0}")
        e(f"v_max_f32 v{vT0}, v{Sc+15}, v{vT0}", f"v_mov_b32 v{vT1}, v{vT0}", "s_nop 1", f"v_permlane32_swap_b32 v{vT1}, v{vT0}", "s_nop 1",
          f"v_max3_f32 v{vT0}, v{vT0}, v{vT1}, v{vM[q]}", f"v_sub_f32 v{vT1}, v{vM[q]}, v{vT0}", f"v_exp_f32 v{vT1}, v{vT1}", f"v_mov_b32 v{vM[q]}, v{vT0}")
        for i in range(16): e(f"v_sub_f32 v{Sc+i}, v{Sc+i}, v{vT0}")
        for i in range(16): e(f"v_exp_f32 v{Sc+i}, v{Sc+i}")
        for i in range(9): e(f"v_mul_f32 v{O[q]+i}, v{O[q]+i}, v{vT1}")
        for i in range(8): e(f"v_cvt_pk_bf16_f32 v{Sc+i}, v{Sc+2*i}, v{Sc+2*i+1}")
        e("s_nop 1", mfma32(vr(O[q],16), vr(V[0],4), vr(Sc,4), vr(O[q],16)), mfma32(vr(O[q],16), vr(V[0]+4,4), vr(Sc+4,4), vr(O[q],16)), nops(4))
    e(f"v_add_u32 v{vKA}, 1024, v{vKA}", f"v_add_u32 v{vVA}, 1024, v{vVA}", nops(10))
    e(f"s_sub_u32 s{sCNT}, s{sCNT}, 1", f"s_cmp_lg_u32 s{sCNT}, 0", f"s_cbranch_scc1 L_{name}_As")
    A.label(f"L_{name}_Acomb")
    e(nops(16))
    for q in range(4):
        e(f"v_mov_b32 v{vT0}, v{O[q]+8}", "s_nop 1", f"v_permlane32_swap_b32 v{O[q]+8}, v{vT0}", "s_nop 1")
        e(f"v_mov_b32 v{O[q]+9}, v{vM[q]}")
    e("s_barrier")
    e(f"s_mul_i32 s{sT}, s{sA}, 5120", f"s_xor_b32 s{sT+1}, s{sA}, 2", f"s_mul_i32 s{sT+1}, s{sT+1}, 5120",
      f"v_lshlrev_b32 v{vT0}, 4, v{vLANE}", f"v_add_u32 v{vT1}, s{sT+1}, v{vT0}", f"v_add_u32 v{vT0}, s{sT}, v{vT0}",
      f"v_lshlrev_b32 v{vT2}, 3, v{vLANE}", f"v_add_u32 v{vT3}, s{sT+1}, v{vT2}", f"v_add_u32 v{vT2}, s{sT}, v{vT2}")
    e(f"s_cmp_eq_u32 s{sKAP}, 0", f"s_cbranch_scc0 L_{name}_k1")
    for kap in range(2):
        if kap == 1: A.label(f"L_{name}_k1")
        send = [2*(1-kap), 2*(1-kap)+1]; keep = [2*kap, 2*kap+1]
        for n, q in enumerate(send):
            e(f"ds_write_b128 v{vT0}, {vr(O[q],4)} offset:{XA_BASE + n*2560}", f"ds_write_b128 v{vT0}, {vr(O[q]+4,4)} offset:{XA_BASE + n*2560 + 1024}",
              f"ds_write_b64 v{vT2}, {vr(O[q]+8,2)} offset:{XA_BASE + n*2560 + 2048}")
        e("s_waitcnt lgkmcnt(0)", "s_barrier")
        for n, q in enumerate(keep):
            X = vX
            e(f"ds_read_b128 {vr(X,4)}, v{vT1} offset:{XA_BASE + n*2560}", f"ds_read_b128 {vr(X+4,4)}, v{vT1} offset:{XA_BASE + n*2560 + 1024}",
              f"ds_read_b64 {vr(X+8,2)}, v{vT3} offset:{XA_BASE + n*2560 + 2048}", "s_waitcnt lgkmcnt(0)")
            e(f"v_max_f32 v{X+10}, v{O[q]+9}, v{X+9}", f"v_sub_f32 v{X+11}, v{O[q]+9}, v{X+10}", f"v_sub_f32 v{X+12}, v{X+9}, v{X+10}",
              f"v_exp_f32 v{X+11}, v{X+11}", f"v_exp_f32 v{X+12}, v{X+12}", "s_nop 0")
            e(f"v_mul_f32 v{X+13}, v{O[q]+8}, v{X+11}", f"v_fma_f32 v{X+13}, v{X+8}, v{X+12}, v{X+13}", f"v_rcp_f32 v{X+13}, v{X+13}", "s_nop 0",
              f"v_mul_f32 v{X+11}, v{X+11}, v{X+13}", f"v_mul_f32 v{X+12}, v{X+12}, v{X+13}")
            for i in range(8): e(f"v_mul_f32 v{O[q]+i}, v{O[q]+i}, v{X+11}", f"v_fma_f32 v{O[q]+i}, v{X+i}, v{X+12}, v{O[q]+i}")
            for p in range(4): e(f"v_cvt_pk_bf16_f32 v{O[q]+p}, v{O[q]+2*p}, v{O[q]+2*p+1}")
            e(f"s_mul_i32 s{sT+2}, s{sTBG}, 88", f"s_lshl_b32 s{sT+3}, s{sJ}, 2", f"s_add_u32 s{sT+2}, s{sT+2}, s{sT+3}", f"s_add_u32 s{sT+2}, s{sT+2}, {q}",
              f"s_lshl_b32 s{sT+2}, s{sT+2}, 10", f"s_add_u32 s{sT+2}, s{sT+2}, {WS_ACT}", f"v_lshlrev_b32 v{X+14}, 4, v{vLANE}",
              f"buffer_store_dwordx4 {vr(O[q],4)}, v{X+14}, {WSR}, s{sT+2} offen")
        e(f"s_branch L_{name}_done")

    A.label(f"L_{name}_B")
    ACC = 12; Z = ACC + 128; W = Z + 64
    vZO, vW0, vW1 = 6, 7, 8
    vWR = [9, 10, 11, 236]
    vB = 237
    vZ1 = Z
    e(f"s_cmp_eq_u32 s{sJ}, 7", f"s_cbranch_scc1 L_{name}_Bidle")
    sKS = sTBG
    e(f"s_lshl_b32 s{sKS}, s{sI}, 2", f"s_add_u32 s{sKS}, s{sKS}, s{sA}")
    PS = W
    RAW = Z
    e(f"s_lshr_b32 s{sT}, s{sKS}, 1", f"s_lshl_b32 s{sT}, s{sT}, 12", f"s_and_b32 s{sT+1}, s{sKS}, 1", f"s_lshl_b32 s{sT+1}, s{sT+1}, 7", f"s_add_u32 s{sT}, s{sT}, s{sT+1}", f"s_add_u32 s{sT}, s{sT}, {WS_ST}",
      f"v_lshrrev_b32 v{vT0}, 4, v{vLANE}", f"v_lshlrev_b32 v{vT0}, 8, v{vT0}", f"v_and_b32 v{vT1}, 15, v{vLANE}", f"v_lshlrev_b32 v{vT1}, 3, v{vT1}", f"v_add_u32 v{vT0}, v{vT0}, v{vT1}")
    for n in range(4): e(f"buffer_load_dwordx2 {vr(PS+2*n,2)}, v{vT0}, {WSR}, s{sT} offen offset:{n*1024}")
    e(f"s_mul_i32 s{sT}, s{sKS}, 28", f"s_lshl_b32 s{sT+1}, s{sJ}, 2", f"s_add_u32 s{sT}, s{sT}, s{sT+1}", f"s_lshl_b32 s{sQO}, s{sT}, 10", f"s_add_u32 s{sT}, s{sQO}, {WS_Z2R}",
      f"v_lshlrev_b32 v{vZO}, 4, v{vLANE}")
    for fb in range(4): e(f"buffer_load_dwordx4 {vr(RAW+4*fb,4)}, v{vZO}, {WSR}, s{sT} offen offset:{fb*1024}")
    kv_fill()
    e("s_waitcnt vmcnt(20)")
    e(f"v_add_f32 v{PS}, v{PS}, v{PS+2}", f"v_add_f32 v{PS+1}, v{PS+1}, v{PS+3}", f"v_add_f32 v{PS+4}, v{PS+4}, v{PS+6}", f"v_add_f32 v{PS+5}, v{PS+5}, v{PS+7}",
      f"v_add_f32 v{PS}, v{PS}, v{PS+4}", f"v_add_f32 v{PS+1}, v{PS+1}, v{PS+5}")
    for r in (PS, PS+1):
        e(f"v_mov_b32 v{vT0}, v{r}", "s_nop 1", f"v_permlane16_swap_b32 v{vT0}, v{r}", "s_nop 1", f"v_add_f32 v{r}, v{r}, v{vT0}",
          f"v_mov_b32 v{vT0}, v{r}", "s_nop 1", f"v_permlane32_swap_b32 v{vT0}, v{r}", "s_nop 1", f"v_add_f32 v{r}, v{r}, v{vT0}")
    e(f"v_mul_f32 v{PS}, {fbits(1/896)}, v{PS}", f"v_mul_f32 v{PS+1}, {fbits(1/896)}, v{PS+1}", f"v_fma_f32 v{PS+1}, -v{PS}, v{PS}, v{PS+1}", f"v_max_f32 v{PS+1}, 0, v{PS+1}",
      f"v_add_f32 v{PS+1}, {fbits(1e-5)}, v{PS+1}", f"v_rsq_f32 v{PS+1}, v{PS+1}", "s_nop 0", f"v_mul_f32 v{PS}, v{PS}, v{PS+1}", f"v_sub_f32 v{PS}, 0, v{PS}")
    e("s_nop 1", f"v_mov_b32_dpp v{PS}, v{PS} row_ror:8 row_mask:0xc bank_mask:0xf", f"v_mov_b32_dpp v{PS+1}, v{PS+1} row_ror:8 row_mask:0xc bank_mask:0xf", "s_nop 1")
    RB = W + 8; CB = W + 16
    for jx in range(8):
        e(f"v_mov_b32_dpp v{RB+jx}, v{PS+1} row_newbcast:{jx} row_mask:0xf bank_mask:0xf", f"v_mov_b32_dpp v{CB+jx}, v{PS} row_newbcast:{jx} row_mask:0xf bank_mask:0xf")
    e("s_waitcnt vmcnt(16)")
    TT = W + 24
    for fb in range(4):
        for p in range(4):
            R_ = RAW + 4*fb + p
            e(f"v_lshlrev_b32 v{TT}, 16, v{R_}", f"v_and_b32 v{TT+1}, 0xffff0000, v{R_}",
              f"v_fma_f32 v{TT}, v{TT}, v{RB+2*p}, v{CB+2*p}", f"v_fma_f32 v{TT+1}, v{TT+1}, v{RB+2*p+1}, v{CB+2*p+1}",
              f"v_cvt_pk_bf16_f32 v{R_}, v{TT}, v{TT+1}")
    e("s_waitcnt vmcnt(0)", "s_barrier")
    e(f"s_add_u32 s{sT}, s{sQO}, {WS_Z2N}")
    for fb in range(4): e(f"buffer_store_dwordx4 {vr(RAW+4*fb,4)}, v{vZO}, {WSR}, s{sT} offen offset:{fb*1024} sc0 sc1")
    e(f"s_lshl_b32 s{sLB}, s{sA}, 13", f"s_add_u32 s{sLB}, s{sLB}, {LDS_BOUNCE}")
    e(f"v_lshrrev_b32 v{vW0}, 3, v{vLANE}", f"v_lshrrev_b32 v{vT0}, 4, v{vLANE}", f"v_xor_b32 v{vT0}, v{vT0}, v{vLANE}", f"v_and_b32 v{vT0}, 7, v{vT0}", f"v_lshlrev_b32 v{vT0}, 4, v{vT0}",
      f"v_lshlrev_b32 v{vW0}, 12, v{vW0}", f"v_add_u32 v{vW0}, v{vW0}, v{vT0}",
      f"s_lshl_b32 s{sT}, s{sI}, 18", f"s_lshl_b32 s{sT+1}, s{sA}, 10", f"s_add_u32 s{sT}, s{sT}, s{sT+1}", f"v_add_u32 v{vW0}, s{sT}, v{vW0}", f"v_xor_b32 v{vW1}, 64, v{vW0}")
    e(f"v_and_b32 v{vT0}, 31, v{vLANE}", f"v_lshrrev_b32 v{vT1}, 1, v{vT0}", f"v_and_b32 v{vT1}, 7, v{vT1}", f"v_lshrrev_b32 v{vT2}, 5, v{vLANE}", f"v_xor_b32 v{vT1}, v{vT1}, v{vT2}",
      f"v_lshlrev_b32 v{vT1}, 4, v{vT1}", f"v_lshlrev_b32 v{vT0}, 7, v{vT0}", f"v_add_u32 v{vT0}, v{vT0}, v{vT1}", f"v_add_u32 v{vWR[0]}, s{sLB}, v{vT0}")
    for ks in range(1, 4): e(f"v_xor_b32 v{vWR[ks]}, {32*ks}, v{vWR[0]}")
    def wdma():
        o = []
        for n in range(8):
            o.append([f"s_add_u32 m0, s{sLB}, {n*1024}", f"s_add_u32 s{sT2}, s{sWO}, {n*32768}", f"buffer_load_dwordx4 v{vW0 if n % 2 == 0 else vW1}, s[{SRD_WSP}:{SRD_WSP+3}], s{sT2} offen lds"])
        o[-1] += [f"s_add_u32 s{sWO}, s{sWO}, 128", f"s_min_u32 s{sWO}, s{sWO}, {7*128}"]
        return o
    def zload(zb, fb): return [f"buffer_load_dwordx4 {vr(Z + 16*zb + 4*fb,4)}, v{vZO}, {WSR}, s{sZ} offen offset:{fb*1024} sc1"] + ([f"s_add_u32 s{sZ}, s{sZ}, 28672"] if fb == 3 else [])
    def wread(ks, tb): return f"ds_read_b128 {vr(W + 8*ks + 4*tb, 4)}, v{vWR[ks]} offset:{tb*4096}"
    def mm(zb, fb, tb, ks): a_ = ACC + 16*(fb*2+tb); return mfma32(vr(a_,16), vr(Z+16*zb+4*fb,4), vr(W+8*ks+4*tb,4), vr(a_,16))
    e(f"s_mov_b32 s{sWO}, 0")
    e("s_waitcnt vmcnt(0)")
    e(f"s_lshl_b32 s{sT}, s{sJ}, 9", f"s_lshl_b32 s{sT+1}, s{sKS}, 2", f"s_add_u32 s{sT}, s{sT}, s{sT+1}", f"s_add_u32 s{sT}, s{sT}, {WS_FLG}",
      f"v_mov_b32 v{vT0}, 0", f"v_mov_b32 v{vT1}, 1", f"buffer_store_dword v{vT1}, v{vT0}, {WSR}, s{sT} offen sc0 sc1")
    e(wdma())
    for i in range(128): e(f"v_mov_b32 v{ACC+i}, 0")
    e(f"s_lshl_b32 s{sT}, s{sJ}, 9", f"s_lshl_b32 s{sT+1}, s{sA}, 7", f"s_add_u32 s{sT}, s{sT}, s{sT+1}", f"s_add_u32 s{sT}, s{sT}, {WS_FLG}",
      f"v_and_b32 v{vT0}, 31, v{vLANE}", f"v_lshlrev_b32 v{vT0}, 2, v{vT0}", f"s_mov_b32 s{sCNT}, {SPIN_MAX}")
    A.label(f"L_{name}_poll")
    e(f"buffer_load_dword v{vT1}, v{vT0}, {WSR}, s{sT} offen sc0 sc1", "s_waitcnt vmcnt(0)", f"v_cmp_ne_u32 vcc, 1, v{vT1}", f"s_sub_u32 s{sCNT}, s{sCNT}, 1",
      f"s_cbranch_vccz L_{name}_pollok", f"s_cmp_eq_u32 s{sCNT}, 0", f"s_cbranch_scc1 L_{name}_pollok", "s_sleep 2", f"s_branch L_{name}_poll")
    A.label(f"L_{name}_pollok")
    e(f"s_mul_i32 s{sZ}, s{sA}, {32*28*1024}", f"s_lshl_b32 s{sT}, s{sJ}, 12", f"s_add_u32 s{sZ}, s{sZ}, s{sT}", f"s_add_u32 s{sZ}, s{sZ}, {WS_Z2N}")
    for zb in range(4):
        for fb in range(4): e(zload(zb, fb))
    for ks in range(4):
        for tb in range(2): e(wread(ks, tb))
    e("s_waitcnt lgkmcnt(0)")
    e(wdma())
    e(f"s_mov_b32 s{sCNT}, 8")
    A.label(f"L_{name}_Bl")
    for jx in range(4):
        zb = jx
        if jx < 3: e("s_waitcnt vmcnt(20)")
        else: e("s_waitcnt vmcnt(12)")
        for fb in range(4):
            e(mm(zb, fb, 0, jx), mm(zb, fb, 1, jx), zload(zb, fb))
            if jx == 3 and fb < 3: e(wread(fb, 0), wread(fb, 1))
        if jx == 3:
            e(wread(3, 0), wread(3, 1), "s_waitcnt lgkmcnt(0)", wdma())
    e(f"s_sub_u32 s{sCNT}, s{sCNT}, 1", f"s_cmp_lg_u32 s{sCNT}, 0", f"s_cbranch_scc1 L_{name}_Bl")
    e("s_waitcnt vmcnt(0)")
    e(f"s_lshl_b32 s{sT}, s{sI}, 1", f"s_mul_i32 s{sT}, s{sT}, 28", f"s_lshl_b32 s{sT+1}, s{sJ}, 2", f"s_add_u32 s{sT}, s{sT}, s{sT+1}", f"s_add_u32 s{sT}, s{sT}, s{sA}",
      f"s_lshl_b32 s{sT}, s{sT}, 11", f"s_add_u32 s{sT}, s{sT}, {WS_Z1}", f"s_add_u32 s{sT+1}, s{sT}, {28*2048}")
    for tb in range(2):
        for m in range(2): e(f"buffer_load_dwordx4 {vr(vZ1 + 8*tb + 4*m,4)}, v{vZO}, {WSR}, s{sT+tb} offen offset:{m*1024}")
    e(f"v_and_b32 v{vT0}, 31, v{vLANE}", f"v_lshlrev_b32 v{vT0}, 1, v{vT0}", f"s_lshl_b32 s{sT}, s{sI}, 7")
    for tb in range(2): e(f"buffer_load_ushort v{vB+tb}, v{vT0}, s[{SRD_BSP}:{SRD_BSP+3}], s{sT} offen offset:{tb*64}")
    e(nops(16))
    e("s_barrier")
    e(f"v_lshlrev_b32 v{vT0}, 4, v{vLANE}")
    for bb in range(4):
        e(f"s_cmp_eq_u32 s{sA}, {bb}", f"s_cbranch_scc0 L_{name}_Bs{bb}")
        for d in range(4):
            if d == bb: continue
            pos = (bb - d - 1) & 3
            base = XB_BASE + (d*3 + pos)*8192
            e(f"v_add_u32 v{vT1}, {base}, v{vT0}")
            for tb in range(2):
                for g in range(4): e(f"ds_write_b128 v{vT1}, {vr(ACC + 16*(d*2+tb) + 4*g, 4)} offset:{tb*4096 + g*1024}")
        e("s_waitcnt lgkmcnt(0)", "s_barrier")
        e(f"v_add_u32 v{vT1}, {XB_BASE + bb*3*8192}, v{vT0}")
        X = W
        for tb in range(2):
            a_ = ACC + 16*(bb*2+tb)
            for pos in range(3):
                for g in range(4): e(f"ds_read_b128 {vr(X+4*g,4)}, v{vT1} offset:{pos*8192 + tb*4096 + g*1024}")
                e("s_waitcnt lgkmcnt(0)")
                for p in range(8): e(f"v_pk_add_f32 {vr(a_+2*p,2)}, {vr(a_+2*p,2)}, {vr(X+2*p,2)}")
            e("s_waitcnt vmcnt(0)")
            e(f"v_lshlrev_b32 v{vT2}, 16, v{vB+tb}")
            for i in range(16): e(f"v_add_f32 v{a_+i}, v{a_+i}, v{vT2}")
            for p in range(8):
                zr = vZ1 + 8*tb + p
                e(f"v_lshlrev_b32 v{X}, 16, v{zr}", f"v_and_b32 v{X+1}, 0xffff0000, v{zr}", f"v_mul_f32 v{X}, v{X}, v{a_+2*p}", f"v_mul_f32 v{X+1}, v{X+1}, v{a_+2*p+1}",
                  f"v_cvt_pk_bf16_f32 v{zr}, v{X}, v{X+1}")
            e(f"s_lshl_b32 s{sT}, s{sI}, 1", f"s_add_u32 s{sT}, s{sT}, {tb}", f"s_mul_i32 s{sT}, s{sT}, 88", f"s_lshl_b32 s{sT+1}, s{sJ}, 3", f"s_add_u32 s{sT}, s{sT}, s{sT+1}",
              f"s_add_u32 s{sT}, s{sT}, {32 + 2*bb}", f"s_lshl_b32 s{sT}, s{sT}, 10", f"s_add_u32 s{sT}, s{sT}, {WS_ACT}")
            for m in range(2): e(f"buffer_store_dwordx4 {vr(vZ1 + 8*tb + 4*m,4)}, v{vZO}, {WSR}, s{sT} offen offset:{m*1024}")
        e(f"s_branch L_{name}_done")
        A.label(f"L_{name}_Bs{bb}")
    e(f"s_branch L_{name}_done")
    A.label(f"L_{name}_Bidle")
    kv_fill()
    e("s_waitcnt vmcnt(0)", "s_barrier", "s_barrier", "s_barrier")
    A.label(f"L_{name}_done")
    e("s_waitcnt vmcnt(0)")
    A.label(f"L_{name}_end")
    e("s_endpgm")
    return kernel_head(name) + A.text() + KD.format(name=name, vgpr=NV, sgpr=64, acc=NV)
```

```python
from asmlib import *

def gen_p3(name, cfg=None):
    cfg = cfg or {}
    A = Asm(); e = A.e
    sX, sWO, sWOUT, sOUT, sWS = 4, 6, 8, 10, 12
    SRD_WS, SRD_X, SRD_OUT, SRD_WO, SRD_WOUT = 16, 20, 24, 28, 32
    sI, sJ, sW = 36, 37, 38
    sT = 40
    sACT, sLB = 48, 49
    WSR = f"s[{SRD_WS}:{SRD_WS+3}]"
    vLANE = 1; vT0, vT1, vT2 = 2, 3, 4
    vAO, vWG, vWR = 5, 6, 7
    ACC = 8
    AF = 72
    WF = 200
    XR = 216
    NV = 232
    NS = 15
    SLOTB = 2048
    e("s_cmp_ge_u32 s2, 256", f"s_cbranch_scc1 L_{name}_end")
    e("s_load_dwordx2 s[4:5], s[0:1], 0", "s_load_dwordx2 s[6:7], s[0:1], 32", "s_load_dwordx4 s[8:11], s[0:1], 72", "s_load_dwordx2 s[12:13], s[0:1], 96")
    e(f"v_and_b32 v{vLANE}, 63, v0", f"v_lshrrev_b32 v{vT0}, 6, v0", "s_nop 0", f"v_readfirstlane_b32 s{sW}, v{vT0}")
    e(f"s_and_b32 s{sT}, s2, 7", f"s_lshr_b32 s{sT+1}, s2, 3", f"s_and_b32 s{sJ}, s{sT+1}, 7", f"s_lshr_b32 s{sI}, s{sT+1}, 3", f"s_lshl_b32 s{sI}, s{sI}, 3", f"s_add_u32 s{sI}, s{sI}, s{sT}")
    e("s_waitcnt lgkmcnt(0)")
    e(srd(SRD_WS, sWS, WS_END), srd(SRD_X, sX, 2048*1024), srd(SRD_OUT, sOUT, 2048*1024), srd(SRD_WO, sWO, 512*1024), srd(SRD_WOUT, sWOUT, 896*1024))
    e(f"s_lshl_b32 s{sT}, s{sI}, 1", f"s_mul_i32 s{sT}, s{sT}, 88", f"s_mul_i32 s{sT+1}, s{sW}, 22", f"s_add_u32 s{sT}, s{sT}, s{sT+1}", f"s_lshl_b32 s{sT}, s{sT}, 10", f"s_add_u32 s{sACT}, s{sT}, {WS_ACT}",
      f"v_lshlrev_b32 v{vAO}, 4, v{vLANE}")
    e(f"v_lshrrev_b32 v{vWG}, 2, v{vLANE}", f"v_lshlrev_b32 v{vWG}, 10, v{vWG}", f"v_and_b32 v{vT0}, 3, v{vLANE}", f"v_lshlrev_b32 v{vT0}, 4, v{vT0}", f"v_add_u32 v{vWG}, v{vWG}, v{vT0}",
      f"s_lshl_b32 s{sT}, s{sJ}, 7", f"v_add_u32 v{vWG}, s{sT}, v{vWG}")
    e(f"s_lshl_b32 s{sLB}, s{sW}, 15")
    e(f"v_lshrrev_b32 v{vWR}, 5, v{vLANE}", f"v_lshlrev_b32 v{vWR}, 2, v{vWR}", f"v_bfe_u32 v{vT0}, v{vLANE}, 2, 2", f"v_add_u32 v{vWR}, v{vWR}, v{vT0}", f"v_lshlrev_b32 v{vWR}, 6, v{vWR}",
      f"v_bfe_u32 v{vT0}, v{vLANE}, 4, 1", f"v_lshlrev_b32 v{vT0}, 5, v{vT0}", f"v_add_u32 v{vWR}, v{vWR}, v{vT0}", f"v_and_b32 v{vT0}, 3, v{vLANE}", f"v_lshlrev_b32 v{vT0}, 3, v{vT0}",
      f"v_add_u32 v{vWR}, v{vWR}, v{vT0}", f"v_add_u32 v{vWR}, s{sLB}, v{vWR}")
    def issue(st):
        slot = st % 16
        o = [f"s_mul_i32 s{sT}, s{sW}, 22", f"s_add_u32 s{sT}, s{sT}, {st}"]
        lab = A.new(f"L_{name}_w")
        o += [f"s_add_u32 m0, s{sLB}, {slot*SLOTB}", f"s_cmp_lt_u32 s{sT}, 32", f"s_cbranch_scc0 {lab}a",
              f"s_lshl_b32 s{sT+1}, s{sT}, 14",
              f"buffer_load_dwordx4 v{vWG}, s[{SRD_WO}:{SRD_WO+3}], s{sT+1} offen lds",
              f"s_add_u32 m0, s{sLB}, {slot*SLOTB + 1024}", f"s_add_u32 s{sT+1}, s{sT+1}, 64",
              f"buffer_load_dwordx4 v{vWG}, s[{SRD_WO}:{SRD_WO+3}], s{sT+1} offen lds",
              f"s_branch {lab}b", f"{lab}a:",
              f"s_sub_u32 s{sT+1}, s{sT}, 32", f"s_lshl_b32 s{sT+1}, s{sT+1}, 14",
              f"buffer_load_dwordx4 v{vWG}, s[{SRD_WOUT}:{SRD_WOUT+3}], s{sT+1} offen lds",
              f"s_add_u32 m0, s{sLB}, {slot*SLOTB + 1024}", f"s_add_u32 s{sT+1}, s{sT+1}, 64",
              f"buffer_load_dwordx4 v{vWG}, s[{SRD_WOUT}:{SRD_WOUT+3}], s{sT+1} offen lds",
              f"{lab}b:"]
        o += [f"s_add_u32 s{sT+2}, s{sACT}, {st*1024}", f"buffer_load_dwordx4 {vr(AF + 8*slot, 4)}, v{vAO}, {WSR}, s{sT+2} offen",
              f"s_add_u32 s{sT+2}, s{sT+2}, {88*1024}", f"buffer_load_dwordx4 {vr(AF + 8*slot + 4, 4)}, v{vAO}, {WSR}, s{sT+2} offen"]
        return o
    for st in range(NS): e(issue(st))
    for i in range(64): e(f"v_mov_b32 v{ACC+i}, 0")
    def wreads(st, buf):
        slot = st % 16
        return [f"ds_read_b64_tr_b16 {vr(WF + 8*buf + 4*nb + 2*hf, 2)}, v{vWR} offset:{slot*SLOTB + nb*1024 + hf*512}" for nb in range(2) for hf in range(2)]
    for st in range(22):
        buf = st % 2
        inflight = min(st + NS, 22) - st - 1
        if st == 0:
            e(f"s_waitcnt vmcnt({4*inflight})", wreads(0, 0))
        if st + 1 < 22:
            nin = min(st + NS, 22) - (st + 1) - 1
            e(f"s_waitcnt vmcnt({4*nin})", wreads(st+1, 1-buf), "s_waitcnt lgkmcnt(4)")
        else:
            e("s_waitcnt lgkmcnt(0)")
        slot = st % 16
        for nb in range(2):
            for tb in range(2):
                a_ = ACC + 16*(nb*2+tb)
                e(mfma32(vr(a_,16), vr(WF + 8*buf + 4*nb, 4), vr(AF + 8*slot + 4*tb, 4), vr(a_,16)))
        if st + NS < 22: e(issue(st + NS))
    e(f"v_lshrrev_b32 v{vT0}, 2, v0", f"s_lshl_b32 s{sT}, s{sI}, 6", f"v_add_u32 v{vT0}, s{sT}, v{vT0}", f"v_lshlrev_b32 v{vT0}, 10, v{vT0}", f"v_and_b32 v{vT1}, 3, v0", f"v_lshlrev_b32 v{vT1}, 5, v{vT1}",
      f"v_add_u32 v{vT0}, v{vT0}, v{vT1}", f"s_lshl_b32 s{sT}, s{sJ}, 7", f"v_add_u32 v{vT2}, s{sT}, v{vT0}")
    e(f"buffer_load_dwordx4 {vr(XR,4)}, v{vT2}, s[{SRD_X}:{SRD_X+3}], 0 offen", f"buffer_load_dwordx4 {vr(XR+4,4)}, v{vT2}, s[{SRD_X}:{SRD_X+3}], 0 offen offset:16")
    e(nops(16), "s_barrier")
    RS = 272; PB = 64*RS
    e(f"v_and_b32 v{vT0}, 31, v{vLANE}", f"v_mul_u32_u24 v{vT0}, {RS}, v{vT0}", f"v_lshrrev_b32 v{vT1}, 5, v{vLANE}", f"v_lshlrev_b32 v{vT1}, 4, v{vT1}", f"v_add_u32 v{vT0}, v{vT0}, v{vT1}",
      f"s_mul_i32 s{sT}, s{sW}, {PB}", f"v_add_u32 v{vT0}, s{sT}, v{vT0}")
    for nb in range(2):
        for tb in range(2):
            for g in range(4): e(f"ds_write_b128 v{vT0}, {vr(ACC + 16*(nb*2+tb) + 4*g, 4)} offset:{tb*32*RS + nb*128 + g*32}")
    e("s_waitcnt lgkmcnt(0)", "s_barrier")
    e(f"v_lshrrev_b32 v{vT0}, 2, v0", f"v_mul_u32_u24 v{vT0}, {RS}, v{vT0}", f"v_and_b32 v{vT1}, 3, v0", f"v_lshlrev_b32 v{vT1}, 6, v{vT1}", f"v_add_u32 v{vT0}, v{vT0}, v{vT1}")
    R0 = AF
    for w in range(4):
        if w*PB + 48 > 65535:
            e(f"v_add_u32 v{vT1}, {w*PB}, v{vT0}")
            for g in range(4): e(f"ds_read_b128 {vr(R0 + 16*w + 4*g, 4)}, v{vT1} offset:{g*16}")
        else:
            for g in range(4): e(f"ds_read_b128 {vr(R0 + 16*w + 4*g, 4)}, v{vT0} offset:{w*PB + g*16}")
    e("s_waitcnt lgkmcnt(0) vmcnt(0)")
    for p in range(8):
        e(f"v_pk_add_f32 {vr(R0+2*p,2)}, {vr(R0+2*p,2)}, {vr(R0+16+2*p,2)}", f"v_pk_add_f32 {vr(R0+32+2*p,2)}, {vr(R0+32+2*p,2)}, {vr(R0+48+2*p,2)}",
          f"v_pk_add_f32 {vr(R0+2*p,2)}, {vr(R0+2*p,2)}, {vr(R0+32+2*p,2)}")
    for p in range(8):
        xr = XR + p
        e(f"v_lshlrev_b32 v{vT0}, 16, v{xr}", f"v_and_b32 v{vT1}, 0xffff0000, v{xr}", f"v_add_f32 v{vT0}, v{vT0}, v{R0+2*p}", f"v_add_f32 v{vT1}, v{vT1}, v{R0+2*p+1}",
          f"v_cvt_pk_bf16_f32 v{xr}, v{vT0}, v{vT1}")
    e(f"buffer_store_dwordx4 {vr(XR,4)}, v{vT2}, s[{SRD_OUT}:{SRD_OUT+3}], 0 offen", f"buffer_store_dwordx4 {vr(XR+4,4)}, v{vT2}, s[{SRD_OUT}:{SRD_OUT+3}], 0 offen offset:16")
    e("s_waitcnt vmcnt(0)")
    A.label(f"L_{name}_end")
    e("s_endpgm")
    return kernel_head(name) + A.text() + KD.format(name=name, vgpr=NV, sgpr=64, acc=NV)
```

```python
from asmlib import *
from p1 import gen_p1
from p2 import gen_p2
from p3 import gen_p3
HEADER = open('parallel_sum__grouped_kv_mqa__mixer_gmlp__prompt.s.ref').read().split('; Override launch')[0] if False else ''
def full_asm(cfg2=None, cfg3=None):
    s = "; generated by gen/build_all.py : three-launch pipeline (projections, attention + spatial gating, output projection)\n"
    s += "; @launch kernel=p1_kernel grid=(256,1,1) block=(512,1,1) lds=151552\n"
    s += "; @launch kernel=p2_kernel grid=(256,1,1) block=(512,1,1) lds=163840\n"
    s += "; @launch kernel=p3_kernel grid=(256,1,1) block=(256,1,1) lds=131072\n"
    s += '.amdgcn_target "amdgcn-amd-amdhsa--gfx950"\n'
    s += gen_p1('p1_kernel') + gen_p2('p2_kernel', cfg2) + gen_p3('p3_kernel', cfg3)
    return s
if __name__ == '__main__':
    import sys
    out = sys.argv[1] if len(sys.argv) > 1 else 'parallel_sum__grouped_kv_mqa__mixer_gmlp__prompt.s'
    open(out, 'w').write(full_asm())
    print('written', out)
```

```python
from build_all import *
import sys
def triv(name):
    A = Asm(); A.e("s_endpgm")
    return kernel_head(name) + A.text() + KD.format(name=name, vgpr=8, sgpr=16, acc=8)
base = full_asm()
lines = base.split("\n")
idx = max(i for i, l in enumerate(lines) if l.startswith("; @launch"))
for n in (1, 3):
    l2 = lines[:idx+1] + ["; @launch kernel=triv_kernel grid=(1,1,1) block=(64,1,1) lds=0"] * n + lines[idx+1:]
    open(f'var_triv{n}.s', 'w').write("\n".join(l2) + triv('triv_kernel'))
l2 = lines[:idx-2] + ["; @launch kernel=triv_kernel grid=(1,1,1) block=(64,1,1) lds=0"] + lines[idx-2:]
open(f'var_trivfirst.s', 'w').write("\n".join(l2) + triv('triv_kernel'))
```

```python
class Asm:
    def __init__(self):
        self.L = []
        self.uid = 0
    def e(self, *xs):
        for x in xs:
            if isinstance(x, (list, tuple)):
                self.e(*x)
            else:
                for l in x.split("\n"):
                    l = l.strip()
                    if l: self.L.append(l)
    def label(self, name): self.L.append(name + ":")
    def new(self, base):
        self.uid += 1
        return f"{base}_{self.uid}"
    def text(self):
        return "\n".join(l if l.endswith(":") else "    " + l for l in self.L) + "\n"

def v(i): return f"v{i}"
def vr(b, n): return f"v[{b}:{b+n-1}]" if n > 1 else f"v{b}"
def a(i): return f"a{i}"
def ar(b, n): return f"a[{b}:{b+n-1}]" if n > 1 else f"a{b}"
def s(i): return f"s{i}"
def sr(b, n): return f"s[{b}:{b+n-1}]" if n > 1 else f"s{b}"

def mfma32(d, A, B, C):
    return f"v_mfma_f32_32x32x16_bf16 {d}, {A}, {B}, {C}"

def srd(dst, ptr, nbytes):
    return [f"s_mov_b32 s{dst}, s{ptr}", f"s_mov_b32 s{dst+1}, s{ptr+1}", f"s_mov_b32 s{dst+2}, {nbytes}", f"s_mov_b32 s{dst+3}, 0x00020000"]

def nops(n):
    out = []
    while n > 0:
        k = min(n, 16)
        out.append(f"s_nop {k-1}")
        n -= k
    return out

KD = """
.section .rodata,"a"
.p2align 6
.amdhsa_kernel {name}
  .amdhsa_next_free_vgpr {vgpr}
  .amdhsa_next_free_sgpr {sgpr}
  .amdhsa_accum_offset {acc}
  .amdhsa_group_segment_fixed_size 0
  .amdhsa_kernarg_size 104
  .amdhsa_user_sgpr_count 2
  .amdhsa_user_sgpr_kernarg_segment_ptr 1
  .amdhsa_system_sgpr_workgroup_id_x 1
  .amdhsa_float_denorm_mode_32 3
  .amdhsa_float_denorm_mode_16_64 3
.end_amdhsa_kernel
"""
def kernel_head(name):
    return f".text\n.globl {name}\n.p2align 8\n.type {name},@function\n{name}:\n"

WS_QF  = 0x000000
WS_KF  = 0x200000
WS_VF  = 0x210000
WS_NRM = 0x220000
WS_FLG = 0x221000
WS_ST  = 0x230000
WS_Z1  = 0x280000
WS_Z2R = 0x600000
WS_Z2N = 0x980000
WS_ACT = 0xD00000
WS_END = 0xD00000 + 64*88*1024

WS_DIAG = 0x2000000
class Diag:
    def __init__(self, A, on, kid):
        self.A = A; self.on = on; self.kid = kid; self.n = 0
    def stamp(self, k):
        if not self.on: return
        self.n = max(self.n, k + 1)
        self.A.e("s_waitcnt lgkmcnt(0)", "s_memrealtime s[96:97]", "s_memtime s[98:99]", "s_waitcnt lgkmcnt(0)", f"s_mov_b32 s{64+2*k}, s96", f"s_mov_b32 s{65+2*k}, s98")
    def init(self):
        if not self.on: return
        for k in range(16): self.A.e(f"s_mov_b32 s{64+2*k}, 0", f"s_mov_b32 s{65+2*k}, 0")
    def flush(self, ws_ptr, wave_sgpr):
        if not self.on: return
        e = self.A.e
        e("s_waitcnt vmcnt(0) lgkmcnt(0)")
        e(f"s_mov_b32 s56, s{ws_ptr}", f"s_mov_b32 s57, s{ws_ptr+1}", "s_mov_b32 s58, 0x8000000", "s_mov_b32 s59, 0x00020000")
        e("s_lshl_b32 s60, s2, 4", f"s_add_u32 s60, s60, s{wave_sgpr}", "s_lshl_b32 s60, s60, 7", f"s_add_u32 s60, s60, {WS_DIAG + self.kid*0x80000}")
        e("v_mov_b32 v0, 0")
        for k in range(16):
            e(f"v_mov_b32 v2, s{64+2*k}", f"v_mov_b32 v3, s{65+2*k}", f"buffer_store_dwordx2 v[2:3], v0, s[56:59], s60 offen offset:{8*k}", "s_nop 1")
        e("s_waitcnt vmcnt(0)")
```

```python
from asmlib import *

SLOT = 36864
LDS_STATS = 147456
LDS_CS = LDS_STATS + 2048
C1 = -2.0 * 1.4426950408889634 * 0.7978845608028654
C3 = C1 * 0.044715
QSCALE = 0.25 * 1.4426950408889634

import struct
def fbits(x): return "0x%08x" % struct.unpack("<I", struct.pack("<f", x))[0]

def gelu_block(A, acc, T, vr_r, sC3, vC1):
    P = range(8)
    for p in P: A.e(f"v_pk_mul_f32 {vr(acc+2*p,2)}, {vr(acc+2*p,2)}, {vr(vr_r,2)} op_sel_hi:[1,0]")
    for p in P: A.e(f"v_pk_mul_f32 {vr(T+2*p,2)}, {vr(acc+2*p,2)}, {vr(acc+2*p,2)}")
    for p in P: A.e(f"v_pk_fma_f32 {vr(T+2*p,2)}, {vr(T+2*p,2)}, {sr(sC3,2)}, {vr(vC1,2)}")
    for p in P: A.e(f"v_pk_mul_f32 {vr(T+2*p,2)}, {vr(T+2*p,2)}, {vr(acc+2*p,2)}")
    for i in range(16): A.e(f"v_exp_f32 v{T+i}, v{T+i}")
    for p in P: A.e(f"v_pk_add_f32 {vr(T+2*p,2)}, {vr(T+2*p,2)}, 1.0 op_sel_hi:[1,0]")
    for i in range(16): A.e(f"v_rcp_f32 v{T+i}, v{T+i}")
    for p in P: A.e(f"v_pk_mul_f32 {vr(acc+2*p,2)}, {vr(acc+2*p,2)}, {vr(T+2*p,2)}")

def gen_p1(name, cfg=None):
    cfg = cfg or {}
    A = Asm(); e = A.e
    D = Diag(A, cfg.get('diag'), 0)
    sX, sWQ, sWK, sWV, sWIN, sWS = 4, 6, 8, 10, 12, 14
    SRD_X, SRD_WS = 16, 20
    sI, sJ, sW, sTB, sROLE = 24, 25, 26, 27, 28
    sTMP = 29
    sC, sCUR, sNXT, sXOFF, sDST = 36, 37, 38, 39, 40
    sSTEP = 41
    sC3 = 44
    sTBG = 46
    sONES = 47
    sB = 48
    vLANE = 1
    vXO = [2, 3]
    vXB = [4, 5, 6, 7]
    vWB = [8, 9, 10, 11]
    vAX = 12; vAW = [13, 53, 13, 53]; vAW1 = 48; vAWQ = 49
    vQB = [128+2, 128+3, 140+1, 140+2]
    vT0, vT1 = 14, 15
    XF = [16, 20, 224, 228]
    WF = [[24 + 4*b for b in range(3)], [36 + 4*b for b in range(3)], [232 + 4*b for b in range(3)], [244 + 4*b for b in range(3)]]
    vCS = [48, 49, 50]
    vS1, vS2 = 51, 52
    mCS = [160, 176, 192]
    vQ1 = [208, 209]
    vQ2 = [210, 211]
    vU = [212, 213, 214, 215, 216, 217, 218, 219]
    vONE = 220
    vG = [54, 56, 58]
    vR = 60
    vMU = 62
    ACC = [64, 80, 96]
    TMP = 112
    vC1 = 128
    vCORB = 132
    vCORA = 136
    vST = 140
    vP = 144
    vTR = 152
    NV = 256

    e("s_cmp_ge_u32 s2, 256", f"s_cbranch_scc1 L_{name}_end")
    e(f"s_load_dwordx4 s[4:7], s[0:1], 0", f"s_load_dwordx4 s[8:11], s[0:1], 16", f"s_load_dwordx2 s[12:13], s[0:1], 48", f"s_load_dwordx2 s[14:15], s[0:1], 96")
    D.init(); D.stamp(0)
    e(f"v_and_b32 v{vLANE}, 63, v0", f"v_lshrrev_b32 v{vT0}, 6, v0", "s_nop 0", f"v_readfirstlane_b32 s{sW}, v{vT0}")
    e(f"s_and_b32 s{sTMP}, s2, 7", f"s_lshr_b32 s{sTMP+1}, s2, 3",
      f"s_lshr_b32 s{sI}, s{sTMP}, 1", f"s_lshl_b32 s{sI}, s{sI}, 2", f"s_lshr_b32 s{sTMP+2}, s{sTMP+1}, 3", f"s_add_u32 s{sI}, s{sI}, s{sTMP+2}",
      f"s_and_b32 s{sJ}, s{sTMP}, 1", f"s_lshl_b32 s{sJ}, s{sJ}, 3", f"s_and_b32 s{sTMP+2}, s{sTMP+1}, 7", f"s_add_u32 s{sJ}, s{sJ}, s{sTMP+2}")
    e(f"s_and_b32 s{sTB}, s{sW}, 3", f"s_lshr_b32 s{sROLE}, s{sW}, 2")
    e(f"s_lshl_b32 s{sTBG}, s{sI}, 2", f"s_add_u32 s{sTBG}, s{sTBG}, s{sTB}")
    e(f"s_mov_b32 s{sONES}, 0x3f803f80", f"s_mov_b32 s{sC3}, {fbits(C3)}", f"s_mov_b32 s{sC3+1}, {fbits(C3)}")
    e(f"v_mov_b32 v{vC1}, {fbits(C1)}", f"v_mov_b32 v{vC1+1}, {fbits(C1)}")
    e(f"s_lshl_b32 s{sTMP}, s{sI}, 7", f"s_lshl_b32 s{sTMP+1}, s{sW}, 4", f"s_add_u32 s{sTMP}, s{sTMP}, s{sTMP+1}", f"s_lshl_b32 s{sTMP}, s{sTMP}, 10")
    for q in range(2):
        e(f"v_lshrrev_b32 v{vT0}, 4, v{vLANE}")
        if q: e(f"v_add_u32 v{vT0}, 4, v{vT0}")
        e(f"v_xor_b32 v{vT0}, v{vT0}, v{vLANE}", f"v_and_b32 v{vT0}, 7, v{vT0}", f"v_lshlrev_b32 v{vT0}, 4, v{vT0}",
          f"v_lshrrev_b32 v{vT1}, 3, v{vLANE}", f"v_lshlrev_b32 v{vT1}, 10, v{vT1}", f"v_add_u32 v{vT0}, v{vT0}, v{vT1}",
          f"v_add_u32 v{vXO[q]}, s{sTMP}, v{vT0}")
        if q: e(f"v_add_u32 v{vXO[q]}, 0x2000, v{vXO[q]}")
    e(f"v_and_b32 v{vT0}, 31, v{vLANE}", f"v_lshrrev_b32 v{vT1}, 1, v{vT0}", f"v_and_b32 v{vT1}, 7, v{vT1}",
      f"v_lshrrev_b32 v{vAX}, 5, v{vLANE}", f"v_xor_b32 v{vT1}, v{vT1}, v{vAX}", f"v_lshlrev_b32 v{vT1}, 4, v{vT1}",
      f"v_lshlrev_b32 v{vT0}, 7, v{vT0}", f"v_add_u32 v{vT0}, v{vT0}, v{vT1}", f"s_lshl_b32 s{sTMP}, s{sTB}, 12", f"v_add_u32 v{vT0}, s{sTMP}, v{vT0}")
    e(f"v_lshrrev_b32 v{vT1}, 5, v{vLANE}", f"v_lshlrev_b32 v{vT1}, 3, v{vT1}", f"v_bfe_u32 v{vAW[0]}, v{vLANE}, 2, 2", f"v_add_u32 v{vT1}, v{vT1}, v{vAW[0]}",
      f"v_bfe_u32 v{vAW1}, v{vLANE}, 4, 1", f"v_lshlrev_b32 v{vAW1}, 5, v{vAW1}", f"v_and_b32 v{vAWQ}, 3, v{vLANE}", f"v_lshlrev_b32 v{vAWQ}, 3, v{vAWQ}", f"v_add_u32 v{vAW1}, v{vAW1}, v{vAWQ}",
      f"v_lshlrev_b32 v{vAWQ}, 6, v{vT1}", f"v_add_u32 v{vAWQ}, v{vAWQ}, v{vAW1}",
      f"v_lshlrev_b32 v{vT1}, 7, v{vT1}", f"v_add_u32 v{vT1}, v{vT1}, v{vAW1}", f"v_bfe_u32 v{vAW1}, v{vLANE}, 3, 1", f"v_lshlrev_b32 v{vAW1}, 6, v{vAW1}", f"v_add_u32 v{vT1}, v{vT1}, v{vAW1}")
    for sp in range(4):
        e(f"s_add_u32 s{sTMP}, s{sTB}, {sp}", f"s_and_b32 s{sTMP}, s{sTMP}, 3", f"s_lshl_b32 s{sTMP+1}, s{sTMP}, 5", f"s_lshl_b32 s{sTMP+2}, s{sTMP}, 11", f"s_lshl_b32 s{sTMP+3}, s{sTMP}, 10",
          f"v_xor_b32 v{vXB[sp]}, s{sTMP+1}, v{vT0}", f"v_add_u32 v{vWB[sp]}, s{sTMP+2}, v{vT1}", f"v_add_u32 v{vQB[sp]}, s{sTMP+3}, v{vAWQ}")
    e("s_waitcnt lgkmcnt(0)")
    e(srd(SRD_X, sX, 2048*1024), srd(SRD_WS, sWS, WS_END))
    vROW, vPC = vXB[0] + 0, vXB[1] + 0
    vROW, vPC = TMP, TMP + 1
    e(f"v_lshrrev_b32 v{vROW}, 3, v{vLANE}", f"s_lshl_b32 s{sTMP}, s{sTB}, 4", f"v_add_u32 v{vROW}, s{sTMP}, v{vROW}",
      f"v_bfe_u32 v{vPC}, v{vLANE}, 4, 1", f"v_lshlrev_b32 v{vPC}, 2, v{vPC}", f"v_xor_b32 v{vPC}, v{vPC}, v{vLANE}", f"v_and_b32 v{vPC}, 7, v{vPC}", f"v_lshlrev_b32 v{vPC}, 4, v{vPC}")
    def pair_addr(ptr, coloff_s, stride):
        e(f"s_add_u32 s{sB}, s{ptr}, s{coloff_s}", f"s_addc_u32 s{sB+1}, s{ptr+1}, 0", f"s_mov_b32 s{sB+2}, {stride}",
          f"v_mul_lo_u32 v{vAX}, v{vROW}, s{sB+2}", f"v_add_u32 v{vAX}, v{vAX}, v{vPC}",
          f"v_mov_b32 v{vG[0]+1}, s{sB+1}", f"v_add_co_u32 v{vG[0]}, vcc, s{sB}, v{vAX}", f"v_addc_co_u32 v{vG[0]+1}, vcc, 0, v{vG[0]+1}, vcc",
          f"v_add_co_u32 v{vG[1]}, vcc, {8*stride}, v{vG[0]}", f"v_addc_co_u32 v{vG[1]+1}, vcc, 0, v{vG[0]+1}, vcc",
          f"s_mov_b32 s{sSTEP}, {64*stride}", f"s_mov_b32 s{sSTEP+1}, {64*stride}")
    e(f"s_cmp_eq_u32 s{sROLE}, 0", f"s_cbranch_scc0 L_{name}_addrY")
    e(f"s_cmp_lt_u32 s{sJ}, 14", f"s_cselect_b32 s{sTMP}, s{sJ}, 0", f"s_lshl_b32 s{sTMP}, s{sTMP}, 7")
    pair_addr(sWIN, sTMP, 3584)
    e(f"v_lshrrev_b32 v{vT0}, 2, v{vLANE}", f"s_lshl_b32 s{sTMP}, s{sTB}, 4", f"v_add_u32 v{vT0}, s{sTMP}, v{vT0}", f"v_and_b32 v{vT1}, 3, v{vLANE}", f"v_lshlrev_b32 v{vT1}, 4, v{vT1}",
      f"s_lshl_b32 s{sTMP}, s{sJ}, 6", f"s_add_u32 s{sB}, s{sWQ}, s{sTMP}", f"s_addc_u32 s{sB+1}, s{sWQ+1}, 0",
      f"v_lshlrev_b32 v{vAX}, 10, v{vT0}", f"v_add_u32 v{vAX}, v{vAX}, v{vT1}",
      f"v_mov_b32 v{vG[2]+1}, s{sB+1}", f"v_add_co_u32 v{vG[2]}, vcc, s{sB}, v{vAX}", f"v_addc_co_u32 v{vG[2]+1}, vcc, 0, v{vG[2]+1}, vcc", f"s_mov_b32 s{sSTEP+2}, {64*1024}")
    e(f"s_cmp_eq_u32 s{sJ}, 14", f"s_cbranch_scc0 L_{name}_addrDone")
    e(f"v_lshlrev_b32 v{vAX}, 5, v{vROW}", f"v_and_b32 v{vT0}, 16, v{vPC}", f"v_add_u32 v{vAX}, v{vAX}, v{vT0}",
      f"v_and_b32 v{vT0}, 0x60, v{vPC}", f"v_cmp_eq_u32 vcc, 32, v{vT0}",
      f"v_mov_b32 v{vAW[0]}, s{sWK}", f"v_mov_b32 v{vG[0]+1}, s{sWK+1}", f"v_mov_b32 v{vG[0]}, s{sWV}", f"v_mov_b32 v{vT1}, s{sWV+1}",
      f"v_cndmask_b32 v{vAW[0]}, v{vAW[0]}, v{vG[0]}, vcc", f"v_cndmask_b32 v{vG[0]+1}, v{vG[0]+1}, v{vT1}, vcc",
      f"v_add_co_u32 v{vG[0]}, vcc, v{vAW[0]}, v{vAX}", f"v_addc_co_u32 v{vG[0]+1}, vcc, 0, v{vG[0]+1}, vcc",
      f"v_add_co_u32 v{vG[1]}, vcc, {8*32}, v{vG[0]}", f"v_addc_co_u32 v{vG[1]+1}, vcc, 0, v{vG[0]+1}, vcc",
      f"s_mov_b32 s{sSTEP}, {64*32}", f"s_mov_b32 s{sSTEP+1}, {64*32}")
    e(f"s_branch L_{name}_addrDone")
    A.label(f"L_{name}_addrY")
    e(f"s_cmp_lt_u32 s{sJ}, 14", f"s_cselect_b32 s{sTMP}, s{sJ}, 0", f"s_lshl_b32 s{sTMP}, s{sTMP}, 7", f"s_add_u32 s{sTMP}, s{sTMP}, 1792")
    pair_addr(sWIN, sTMP, 3584)
    e(f"v_mov_b32 v{vG[2]}, v{vG[1]}", f"v_mov_b32 v{vG[2]+1}, v{vG[1]+1}", f"s_mov_b32 s{sSTEP+2}, 0")
    A.label(f"L_{name}_addrDone")

    WOFF = {0: 16384, 1: 16384 + 12288}
    QOFF = 16384 + 8192
    def dma_pieces(nb, blk0, slot_s):
        P = []
        for q in range(2):
            o = []
            if q == 0: o += [f"s_lshl_b32 s{sDST}, s{sW}, 11", f"s_add_u32 s{sDST}, s{sDST}, s{slot_s}"]
            o += [f"s_add_u32 m0, s{sDST}, {q*1024}", "s_nop 0", f"buffer_load_dwordx4 v{vXO[q]}, s[{SRD_X}:{SRD_X+3}], s{sXOFF} offen lds" if not cfg.get('noX') else "s_nop 0"]
            if q == 1: o += [f"s_add_u32 s{sXOFF}, s{sXOFF}, 128"]
            P.append(o)
        role_ = 0 if nb == 3 else 1
        for b in range(nb):
            o = []
            if b == 0: o += [f"s_lshl_b32 s{sDST}, s{sTB}, 11", f"s_add_u32 s{sDST}, s{sDST}, s{slot_s}"]
            if b == 2: o += [f"s_lshl_b32 s{sDST}, s{sTB}, 10", f"s_add_u32 s{sDST}, s{sDST}, s{slot_s}"]
            dst = WOFF[role_] + b*1024 if b < 2 else QOFF
            o += [f"s_add_u32 m0, s{sDST}, {dst}", "s_nop 0", f"global_load_lds_dwordx4 {vr(vG[b],2)}, off" if not cfg.get('noW') else "s_nop 0",
                  f"v_add_co_u32 v{vG[b]}, vcc, s{sSTEP+b}, v{vG[b]}", f"v_addc_co_u32 v{vG[b]+1}, vcc, 0, v{vG[b]+1}, vcc"]
            P.append(o)
        return P
    def dma_chunk(nb, blk0, slot_s):
        return [x for p in dma_pieces(nb, blk0, slot_s) for x in p]
    def read_groups(nb, blk0, sp, buf, slot_s):
        role_ = 0 if nb == 3 else 1
        G = [[f"v_add_u32 v{vAX}, s{slot_s}, v{vXB[sp]}", f"v_add_u32 v{vAW[buf]}, s{slot_s}, v{vWB[sp]}", f"ds_read_b128 {vr(XF[buf],4)}, v{vAX}"]]
        for b in range(nb):
            if b == 0: ad, off, d2 = vAW[buf], WOFF[role_], 512
            elif b == 1: ad, off, d2 = vAW1, WOFF[role_], 512
            else: ad, off, d2 = vAWQ, QOFF, 256
            g = []
            if b == 1: g.append(f"v_xor_b32 v{vAW1}, 64, v{vAW[buf]}")
            if b == 2: g.append(f"v_add_u32 v{vAWQ}, s{slot_s}, v{vQB[sp]}")
            g += [f"ds_read_b64_tr_b16 {vr(WF[buf][b],2)}, v{ad} offset:{off}", f"ds_read_b64_tr_b16 {vr(WF[buf][b]+2,2)}, v{ad} offset:{off+d2}"]
            if b == 0: G[0] += g
            else: G.append(g)
        if cfg.get('noR'): G = [G[0][:2]] + [[] for _ in range(nb-1)]
        if cfg.get('noAddr'):
            G[0] = G[0][2:]
            G = [[x.replace(f", v{vAX}", f", v{vXB[sp]}").replace(f", v{vAW[buf]} ", f", v{vWB[sp]} ") for x in g] for g in G]
        return G

    def main(role):
        nb = 3 if role == 0 else 2
        blk0 = 0 if role == 0 else 3
        n = 2 + nb
        L = f"L_{name}_r{role}"
        e(f"s_mov_b32 s{sXOFF}, 0")
        if cfg.get('prio', (0, 0))[role]: e(f"s_setprio {cfg.get('prio', (0, 0))[role]}")
        for c in range(3):
            e(f"s_mov_b32 s{sTMP}, {c*SLOT}")
            e(dma_chunk(nb, blk0, sTMP))
        D.stamp(1)
        for b in range(nb):
            for i in range(16): e(f"v_mov_b32 v{ACC[b]+i}, 0")
            for i in range(16): e(f"v_mov_b32 v{mCS[b]+i}, 0")
        for i in range(2): e(f"v_mov_b32 v{vQ1[i]}, 0", f"v_mov_b32 v{vQ2[i]}, 0")
        for i in range(4): e(f"v_mov_b32 v{vONE+i}, 0x3f803f80")
        e(f"s_waitcnt vmcnt({2*n})", "s_barrier")
        D.stamp(2)
        e(f"s_mov_b32 s{sC}, 0", f"s_mov_b32 s{sCUR}, 0", f"s_mov_b32 s{sNXT}, {SLOT}")
        e([x for g in read_groups(nb, blk0, 0, 0, sCUR) for x in g])
        e([x for g in read_groups(nb, blk0, 1, 1, sCUR) for x in g])
        m44 = lambda d, a_, b_: f"v_mfma_f32_4x4x4_16b_bf16 {vr(d,4)}, {vr(a_,2)}, {vr(b_,2)}, {vr(d,4)}"
        def body(with_dma, Ln):
            for sp in range(4):
                buf = sp
                pieces = []
                if sp == 2:
                    if with_dma:
                        e(f"s_waitcnt vmcnt({n})", "s_barrier" if not cfg.get('noB') else "s_nop 0",
                          f"s_add_u32 s{sTMP}, s{sC}, 3", f"s_and_b32 s{sTMP}, s{sTMP}, 3", f"s_mul_i32 s{sTMP}, s{sTMP}, {SLOT}")
                    else:
                        e(f"s_cmp_eq_u32 s{sC}, 7", f"s_cbranch_scc1 {Ln}_nob", f"s_cmp_eq_u32 s{sC}, 6", f"s_cbranch_scc1 {Ln}_w0",
                          f"s_waitcnt vmcnt({n})", f"s_branch {Ln}_bar", f"{Ln}_w0:", "s_waitcnt vmcnt(0)", f"{Ln}_bar:", "s_barrier" if not cfg.get('noB') else "s_nop 0", f"{Ln}_nob:")
                if with_dma and sp >= 2 and not cfg.get('noP'):
                    allp = dma_pieces(nb, blk0, sTMP)
                    h = (len(allp) + 1) // 2
                    pieces = allp[:h] if sp == 2 else allp[h:]
                G = read_groups(nb, blk0, (sp+2) % 4, (sp+2) % 4, sCUR if sp < 2 else sNXT)
                nr = [len([x for x in g if x.startswith('ds_')]) for g in G]
                sq = []
                if not cfg.get('noD'):
                    for i in range(2):
                        xr = XF[buf] + 2*role + i
                        sq.append([f"v_lshlrev_b32 v{vU[2*i]}, 16, v{xr}", f"v_and_b32 v{vU[2*i+1]}, 0xffff0000, v{xr}"])
                    for i in range(2):
                        sq.append([f"v_add_f32 v{vQ1[0]}, v{vQ1[0]}, v{vU[2*i]}", f"v_add_f32 v{vQ1[1]}, v{vQ1[1]}, v{vU[2*i+1]}"])
                        sq.append([f"v_fma_f32 v{vQ2[0]}, v{vU[2*i]}, v{vU[2*i]}, v{vQ2[0]}", f"v_fma_f32 v{vQ2[1]}, v{vU[2*i+1]}, v{vU[2*i+1]}, v{vQ2[1]}"])
                for b in range(nb):
                    pend = sum(nr[b+1:]) + sum(nr) + sum(nr[:b])
                    e(f"s_waitcnt lgkmcnt({pend})")
                    if not cfg.get('noM'): e(mfma32(vr(ACC[b],16), vr(WF[buf][b],4), vr(XF[buf],4), vr(ACC[b],16)))
                    e(G[b])
                    if pieces: e(pieces.pop(0))
                    for _ in range(2 if nb == 3 else 3):
                        if sq: e(sq.pop(0))
                if not cfg.get('noD'):
                    while sq: e(sq.pop(0))
                    if sp == 0 and not cfg.get('noCS'):
                        for b in range(nb): e(mfma32(vr(mCS[b],16), vr(vONE,4), vr(WF[buf][b],4), vr(mCS[b],16)))
                while pieces: e(pieces.pop(0))
            if cfg.get('chunkstamp'):
                for k in range(14, 7, -1): e(f"s_mov_b32 s{65+2*k}, s{65+2*(k-1)}", f"s_mov_b32 s{64+2*k}, 1")
                e("s_memtime s[98:99]", "s_waitcnt lgkmcnt(0)", f"s_mov_b32 s{65+2*7}, s98", f"s_mov_b32 s{64+2*7}, 1")
            e(f"s_add_u32 s{sC}, s{sC}, 1", f"s_mov_b32 s{sCUR}, s{sNXT}", f"s_add_u32 s{sTMP}, s{sC}, 1", f"s_and_b32 s{sTMP}, s{sTMP}, 3", f"s_mul_i32 s{sNXT}, s{sTMP}, {SLOT}")
        A.label(L)
        body(True, L)
        e(f"s_cmp_lt_u32 s{sC}, 5", f"s_cbranch_scc1 {L}")
        A.label(f"{L}_b")
        body(False, f"{L}_b")
        e(f"s_cmp_lt_u32 s{sC}, 8", f"s_cbranch_scc1 {L}_b")
        e("s_waitcnt lgkmcnt(0)")
        D.stamp(3)
        e(f"v_add_f32 v{vS1}, v{vQ1[0]}, v{vQ1[1]}", f"v_add_f32 v{vS2}, v{vQ2[0]}, v{vQ2[1]}", f"v_mov_b32 v{vT0}, v{vS1}", f"v_mov_b32 v{vT1}, v{vS2}", "s_nop 0",
          f"v_permlane32_swap_b32 v{vT0}, v{vS1}", f"v_permlane32_swap_b32 v{vT1}, v{vS2}", "s_nop 0", f"v_add_f32 v{vMU}, v{vS1}, v{vT0}", f"v_add_f32 v{vMU+1}, v{vS2}, v{vT1}",
          f"v_and_b32 v{vT0}, 31, v{vLANE}", f"s_lshl_b32 s{sTMP}, s{sTB}, 5", f"v_add_u32 v{vT1}, s{sTMP}, v{vT0}", f"v_lshlrev_b32 v{vT1}, 3, v{vT1}", f"v_add_u32 v{vT1}, {LDS_STATS}, v{vT1}",
          f"ds_write_b64 v{vT1}, {vr(vMU,2)} offset:{role*1024}",
          f"v_lshlrev_b32 v{vT0}, 2, v{vT0}", f"s_mul_i32 s{sTMP}, s{sTB}, 640", f"s_add_u32 s{sTMP}, s{sTMP}, {LDS_CS + blk0*128}", f"v_add_u32 v{vT0}, s{sTMP}, v{vT0}")
        for b in range(nb): e(f"ds_write_b32 v{vT0}, v{mCS[b]} offset:{b*128}")
        e("s_waitcnt lgkmcnt(0)", "s_barrier")
        CSR = [16, 32, 224]
        CT = [160, 176, 192]
        e(f"ds_read_b64 {vr(vMU,2)}, v{vT1}", f"ds_read_b64 {vr(vS1+1,2)}, v{vT1} offset:1024",
          f"v_lshrrev_b32 v{vT0}, 5, v{vLANE}", f"v_lshlrev_b32 v{vT0}, 4, v{vT0}", f"v_add_u32 v{vT0}, {LDS_CS + blk0*128}, v{vT0}")
        e("s_waitcnt lgkmcnt(0)")
        e(f"v_add_f32 v{vMU}, v{vMU}, v{vS1+1}", f"v_add_f32 v{vMU+1}, v{vMU+1}, v{vS1+2}")
        for b in range(nb):
            for g in range(4): e(f"ds_read_b128 {vr(CSR[b]+4*g,4)}, v{vT0} offset:{b*128 + g*32}")
            for g in range(4): e(f"ds_read_b128 {vr(CT[b]+4*g,4)}, v{vT0} offset:{640 + b*128 + g*32}")
            if b == 0:
                e(f"v_mul_f32 v{vMU}, {fbits(1/512)}, v{vMU}", f"v_mul_f32 v{vMU+1}, {fbits(1/512)}, v{vMU+1}",
                  f"v_fma_f32 v{vMU+1}, -v{vMU}, v{vMU}, v{vMU+1}", f"v_max_f32 v{vMU+1}, 0, v{vMU+1}", f"v_add_f32 v{vMU+1}, {fbits(1e-5)}, v{vMU+1}",
                  f"v_rsq_f32 v{vR}, v{vMU+1}", f"v_sub_f32 v{vMU}, 0, v{vMU}")
            e("s_waitcnt lgkmcnt(0)")
            for p in range(8): e(f"v_pk_add_f32 {vr(CSR[b]+2*p,2)}, {vr(CSR[b]+2*p,2)}, {vr(CT[b]+2*p,2)}")
            for g in range(4): e(f"ds_read_b128 {vr(CT[b]+4*g,4)}, v{vT0} offset:{2*640 + b*128 + g*32}")
            for g in range(4): e(f"ds_read_b128 {vr(TMP+4*g,4)}, v{vT0} offset:{3*640 + b*128 + g*32}")
            e("s_waitcnt lgkmcnt(0)")
            for p in range(8): e(f"v_pk_add_f32 {vr(CT[b]+2*p,2)}, {vr(CT[b]+2*p,2)}, {vr(TMP+2*p,2)}", f"v_pk_add_f32 {vr(CSR[b]+2*p,2)}, {vr(CSR[b]+2*p,2)}, {vr(CT[b]+2*p,2)}")
        for b in range(nb):
            for p in range(8): e(f"v_pk_fma_f32 {vr(ACC[b]+2*p,2)}, {vr(CSR[b]+2*p,2)}, {vr(vMU,2)}, {vr(ACC[b]+2*p,2)} op_sel_hi:[1,0,1]")
        D.stamp(4)
        laneoff = lambda: [f"v_lshlrev_b32 v{vST}, 4, v{vLANE}"]
        def pack8(acc):
            for p in range(8): e(f"v_cvt_pk_bf16_f32 v{vP+p}, v{acc+2*p}, v{acc+2*p+1}")
        def z1_epi(b, fb_expr_s):
            gelu_block(A, ACC[b], TMP, vR, sC3, vC1)
            pack8(ACC[b])
            e(f"s_mul_i32 s{sTMP}, s{sTBG}, 28", f"s_add_u32 s{sTMP}, s{sTMP}, s{fb_expr_s}", f"s_lshl_b32 s{sTMP}, s{sTMP}, 11", f"s_add_u32 s{sTMP}, s{sTMP}, {WS_Z1}")
            e(laneoff())
            e(f"buffer_store_dwordx4 {vr(vP,4)}, v{vST}, s[{SRD_WS}:{SRD_WS+3}], s{sTMP} offen", f"buffer_store_dwordx4 {vr(vP+4,4)}, v{vST}, s[{SRD_WS}:{SRD_WS+3}], s{sTMP} offen offset:1024")
        if role == 0:
            b = 2
            e(f"v_mul_f32 v{vR+1}, {fbits(QSCALE)}, v{vR}")
            for p in range(8): e(f"v_pk_mul_f32 {vr(ACC[b]+2*p,2)}, {vr(ACC[b]+2*p,2)}, {vr(vR,2)} op_sel:[0,1] op_sel_hi:[1,1]")
            pack8(ACC[b])
            e(f"s_lshl_b32 s{sTMP}, s{sTBG}, 5", f"s_lshl_b32 s{sTMP+1}, s{sJ}, 1", f"s_add_u32 s{sTMP}, s{sTMP}, s{sTMP+1}", f"s_lshl_b32 s{sTMP}, s{sTMP}, 10", f"s_add_u32 s{sTMP}, s{sTMP}, {WS_QF}")
            e(laneoff())
            e(f"buffer_store_dwordx4 {vr(vP,4)}, v{vST}, s[{SRD_WS}:{SRD_WS+3}], s{sTMP} offen", f"buffer_store_dwordx4 {vr(vP+4,4)}, v{vST}, s[{SRD_WS}:{SRD_WS+3}], s{sTMP} offen offset:1024")
            e(f"s_cmp_lt_u32 s{sJ}, 14", f"s_cbranch_scc0 L_{name}_notz1")
            e(f"s_lshl_b32 s{sTMP+3}, s{sJ}, 1")
            z1_epi(0, sTMP+3)
            e(f"s_add_u32 s{sTMP+3}, s{sTMP+3}, 1")
            z1_epi(1, sTMP+3)
            e(f"s_branch L_{name}_done")
            A.label(f"L_{name}_notz1")
            e(f"s_cmp_eq_u32 s{sJ}, 14", f"s_cbranch_scc0 L_{name}_done")
            b = 0; acc = ACC[0]
            for p in range(8): e(f"v_pk_mul_f32 {vr(acc+2*p,2)}, {vr(acc+2*p,2)}, {vr(vR,2)} op_sel_hi:[1,0]")
            e(f"v_mul_f32 v{vT0}, v{acc}, v{acc}")
            for i in range(1, 8): e(f"v_fma_f32 v{vT0}, v{acc+i}, v{acc+i}, v{vT0}")
            e(f"v_mov_b32 v{vT1}, v{vT0}", "s_nop 1", f"v_permlane32_swap_b32 v{vT1}, v{vT0}", "s_nop 1", f"v_add_f32 v{vT0}, v{vT0}, v{vT1}")
            e(f"v_max3_f32 v{vT1}, abs(v{acc+8}), abs(v{acc+9}), abs(v{acc+10})", f"v_max3_f32 v{vT1}, abs(v{acc+11}), abs(v{acc+12}), v{vT1}",
              f"v_max3_f32 v{vT1}, abs(v{acc+13}), abs(v{acc+14}), v{vT1}", f"v_max_f32 v{vT1}, abs(v{acc+15}), v{vT1}")
            for reg in (vT0, vT1):
                for sh in (8, 4, 2, 1):
                    e("s_nop 1", f"v_max_f32_dpp v{reg}, v{reg}, v{reg} row_ror:{sh} row_mask:0xf bank_mask:0xf")
                e(f"v_mov_b32 v{vAX}, v{reg}", "s_nop 1", f"v_permlane16_swap_b32 v{vAX}, v{reg}", "s_nop 1", f"v_max_f32 v{reg}, v{reg}, v{vAX}",
                  f"v_mov_b32 v{vAX}, v{reg}", "s_nop 1", f"v_permlane32_swap_b32 v{vAX}, v{reg}", "s_nop 1", f"v_max_f32 v{reg}, v{reg}, v{vAX}")
            e(f"s_lshl_b32 s{sTMP}, s{sTBG}, 2", f"s_add_u32 s{sTMP}, s{sTMP}, {WS_NRM}", f"v_mov_b32 v{vST}, 0",
              f"buffer_store_dword v{vT0}, v{vST}, s[{SRD_WS}:{SRD_WS+3}], s{sTMP} offen", f"buffer_store_dword v{vT1}, v{vST}, s[{SRD_WS}:{SRD_WS+3}], s{sTMP} offen offset:256")
            pack8(acc)
            e(f"s_lshl_b32 s{sTMP}, s{sTBG}, 10", f"s_add_u32 s{sTMP+1}, s{sTMP}, {WS_KF}")
            e(laneoff())
            e(f"buffer_store_dwordx4 {vr(vP,4)}, v{vST}, s[{SRD_WS}:{SRD_WS+3}], s{sTMP+1} offen")
            e(f"v_and_b32 v{vT0}, 31, v{vLANE}", f"v_mul_u32_u24 v{vT0}, 40, v{vT0}", f"v_lshrrev_b32 v{vT1}, 5, v{vLANE}", f"v_lshlrev_b32 v{vT1}, 3, v{vT1}",
              f"v_add_u32 v{vT0}, v{vT0}, v{vT1}", f"s_mul_i32 s{sTMP+2}, s{sW}, 2560", f"v_add_u32 v{vT0}, s{sTMP+2}, v{vT0}",
              f"ds_write_b64 v{vT0}, {vr(vP+4,2)}", f"ds_write_b64 v{vT0}, {vr(vP+6,2)} offset:16")
            e(f"v_bfe_u32 v{vT0}, v{vLANE}, 4, 1", f"v_lshlrev_b32 v{vT0}, 4, v{vT0}", f"v_lshrrev_b32 v{vT1}, 5, v{vLANE}", f"v_lshlrev_b32 v{vT1}, 2, v{vT1}", f"v_add_u32 v{vT0}, v{vT0}, v{vT1}",
              f"v_bfe_u32 v{vT1}, v{vLANE}, 2, 2", f"v_add_u32 v{vT0}, v{vT0}, v{vT1}", f"v_mul_u32_u24 v{vT0}, 40, v{vT0}", f"v_and_b32 v{vT1}, 3, v{vLANE}", f"v_lshlrev_b32 v{vT1}, 3, v{vT1}",
              f"v_add_u32 v{vT0}, v{vT0}, v{vT1}", f"v_add_u32 v{vT0}, s{sTMP+2}, v{vT0}",
              "s_waitcnt lgkmcnt(0)",
              f"ds_read_b64_tr_b16 {vr(vTR,2)}, v{vT0}", f"ds_read_b64_tr_b16 {vr(vTR+2,2)}, v{vT0} offset:320")
            e(f"v_bfe_u32 v{vST}, v{vLANE}, 4, 1", f"v_lshlrev_b32 v{vST}, 9, v{vST}", f"v_lshrrev_b32 v{vT1}, 5, v{vLANE}", f"v_lshlrev_b32 v{vT1}, 8, v{vT1}", f"v_add_u32 v{vST}, v{vST}, v{vT1}",
              f"v_and_b32 v{vT1}, 15, v{vLANE}", f"v_lshlrev_b32 v{vT1}, 4, v{vT1}", f"v_add_u32 v{vST}, v{vST}, v{vT1}",
              f"s_add_u32 s{sTMP+1}, s{sTMP}, {WS_VF}", "s_waitcnt lgkmcnt(0)",
              f"buffer_store_dwordx4 {vr(vTR,4)}, v{vST}, s[{SRD_WS}:{SRD_WS+3}], s{sTMP+1} offen")
            e(f"s_branch L_{name}_done")
        else:
            e(f"s_cmp_lt_u32 s{sJ}, 14", f"s_cbranch_scc0 L_{name}_noz2")
            vZS = 208
            for i in range(4): e(f"v_mov_b32 v{vZS+i}, 0")
            vWR, vRD = vXB[0], vXB[1]
            e(f"v_and_b32 v{vWR}, 31, v{vLANE}", f"v_mul_u32_u24 v{vWR}, 72, v{vWR}", f"v_lshrrev_b32 v{vT1}, 5, v{vLANE}", f"v_lshlrev_b32 v{vT1}, 3, v{vT1}",
              f"v_add_u32 v{vWR}, v{vWR}, v{vT1}", f"s_mul_i32 s{sTMP+2}, s{sW}, 2560", f"v_add_u32 v{vWR}, s{sTMP+2}, v{vWR}")
            e(f"v_lshrrev_b32 v{vRD}, 5, v{vLANE}", f"v_lshlrev_b32 v{vRD}, 3, v{vRD}", f"v_bfe_u32 v{vT1}, v{vLANE}, 2, 2", f"v_add_u32 v{vRD}, v{vRD}, v{vT1}", f"v_mul_u32_u24 v{vRD}, 72, v{vRD}",
              f"v_bfe_u32 v{vT1}, v{vLANE}, 4, 1", f"v_lshlrev_b32 v{vT1}, 5, v{vT1}", f"v_add_u32 v{vRD}, v{vRD}, v{vT1}", f"v_and_b32 v{vT1}, 3, v{vLANE}", f"v_lshlrev_b32 v{vT1}, 3, v{vT1}",
              f"v_add_u32 v{vRD}, v{vRD}, v{vT1}", f"v_add_u32 v{vRD}, s{sTMP+2}, v{vRD}")
            for b in range(2):
                acc = ACC[b]
                gelu_block(A, acc, TMP, vR, sC3, vC1)
                for p in range(8): e(f"v_pk_add_f32 {vr(vZS,2)}, {vr(vZS,2)}, {vr(acc+2*p,2)}", f"v_pk_fma_f32 {vr(vZS+2,2)}, {vr(acc+2*p,2)}, {vr(acc+2*p,2)}, {vr(vZS+2,2)}")
                pack8(acc)
                for g in range(4): e(f"ds_write_b64 v{vWR}, {vr(vP+2*g,2)} offset:{16*g}")
                e("s_waitcnt lgkmcnt(0)")
                for m in range(2):
                    e(f"ds_read_b64_tr_b16 {vr(vTR+4*m,2)}, v{vRD} offset:{m*16*72}", f"ds_read_b64_tr_b16 {vr(vTR+4*m+2,2)}, v{vRD} offset:{m*16*72+4*72}")
                e(f"s_lshl_b32 s{sTMP}, s{sTBG}, 1", f"s_mul_i32 s{sTMP}, s{sTMP}, 28", f"s_lshl_b32 s{sTMP+1}, s{sJ}, 1", f"s_add_u32 s{sTMP}, s{sTMP}, s{sTMP+1}", f"s_add_u32 s{sTMP}, s{sTMP}, {b}",
                  f"s_lshl_b32 s{sTMP}, s{sTMP}, 10", f"s_add_u32 s{sTMP}, s{sTMP}, {WS_Z2R}", f"s_add_u32 s{sTMP+1}, s{sTMP}, {28*1024}")
                e(laneoff())
                e("s_waitcnt lgkmcnt(0)")
                e(f"buffer_store_dwordx4 {vr(vTR,4)}, v{vST}, s[{SRD_WS}:{SRD_WS+3}], s{sTMP} offen", f"buffer_store_dwordx4 {vr(vTR+4,4)}, v{vST}, s[{SRD_WS}:{SRD_WS+3}], s{sTMP+1} offen")
                e("s_nop 1")
            e(f"v_add_f32 v{vS1}, v{vZS}, v{vZS+1}", f"v_add_f32 v{vS2}, v{vZS+2}, v{vZS+3}")
            e(f"s_branch L_{name}_st")
            A.label(f"L_{name}_noz2")
            e(f"v_mov_b32 v{vS1}, 0", f"v_mov_b32 v{vS2}, 0")
            e(f"s_cmp_eq_u32 s{sJ}, 15", f"s_cbranch_scc0 L_{name}_st", f"s_cmp_eq_u32 s{sI}, 0", f"s_cbranch_scc0 L_{name}_st")
            for i in range(4): e(f"v_mov_b32 v{vP+i}, 0")
            e(f"s_lshl_b32 s{sTMP}, s{sTB}, 10", f"s_add_u32 s{sTMP}, s{sTMP}, {WS_FLG}")
            e(laneoff())
            e(f"buffer_store_dwordx4 {vr(vP,4)}, v{vST}, s[{SRD_WS}:{SRD_WS+3}], s{sTMP} offen")
            A.label(f"L_{name}_st")
            for S in (vS1, vS2):
                e(f"v_mov_b32 v{vT1}, v{S}", "s_nop 1", f"v_permlane32_swap_b32 v{vT1}, v{S}", "s_nop 1", f"v_add_f32 v{S}, v{S}, v{vT1}")
            e(f"v_mov_b32 v{vP}, v{vS1}", f"v_mov_b32 v{vP+1}, v{vS2}",
              f"s_lshl_b32 s{sTMP}, s{sTBG}, 4", f"s_add_u32 s{sTMP}, s{sTMP}, s{sJ}", f"s_lshl_b32 s{sTMP}, s{sTMP}, 8", f"s_add_u32 s{sTMP}, s{sTMP}, {WS_ST}",
              f"v_and_b32 v{vST}, 31, v{vLANE}", f"v_lshlrev_b32 v{vST}, 3, v{vST}",
              f"buffer_store_dwordx2 {vr(vP,2)}, v{vST}, s[{SRD_WS}:{SRD_WS+3}], s{sTMP} offen")
            e(f"s_branch L_{name}_done")

    e(f"s_cmp_eq_u32 s{sROLE}, 0", f"s_cbranch_scc0 L_{name}_Y")
    main(0)
    A.label(f"L_{name}_Y")
    main(1)
    A.label(f"L_{name}_done")
    D.stamp(5)
    e("s_waitcnt vmcnt(0)")
    D.stamp(6)
    D.flush(sWS, sW)
    A.label(f"L_{name}_end")
    e("s_endpgm")
    txt = kernel_head(name) + A.text() + KD.format(name=name, vgpr=NV, sgpr=100, acc=NV)
    return txt
```

```python
from asmlib import *
import struct
def fbits(x): return "0x%08x" % struct.unpack("<I", struct.pack("<f", x))[0]

LDS_V = 65536
LDS_BOUNCE = 131072
XA_BASE = 0
XB_BASE = 32768
SPIN_MAX = 1 << 20

def wave_max(e, reg, tmp):
    for sh in (8, 4, 2, 1):
        e("s_nop 1", f"v_max_f32_dpp v{reg}, v{reg}, v{reg} row_ror:{sh} row_mask:0xf bank_mask:0xf")
    e(f"v_mov_b32 v{tmp}, v{reg}", "s_nop 1", f"v_permlane16_swap_b32 v{tmp}, v{reg}", "s_nop 1", f"v_max_f32 v{reg}, v{reg}, v{tmp}",
      f"v_mov_b32 v{tmp}, v{reg}", "s_nop 1", f"v_permlane32_swap_b32 v{tmp}, v{reg}", "s_nop 1", f"v_max_f32 v{reg}, v{reg}, v{tmp}")

def gen_p2(name, cfg=None):
    cfg = cfg or {}
    A = Asm(); e = A.e
    D = Diag(A, cfg.get('diag'), 1)
    sWS, sWSP, sBSP = 4, 6, 8
    SRD_WS, SRD_WSP, SRD_BSP = 12, 16, 20
    sI, sJ, sW, sA = 24, 25, 26, 27
    sT = 28
    sCNT, sTBG, sQO = 36, 37, 38
    sLB = 39; sEX = 40; sZ, sWO, sT2 = 42, 43, 44
    sKAP = 45
    WSR = f"s[{SRD_WS}:{SRD_WS+3}]"
    vLANE = 1; vT0, vT1, vT2, vT3 = 2, 3, 4, 5
    NV = 256
    e("s_cmp_ge_u32 s2, 256", f"s_cbranch_scc1 L_{name}_end")
    e("s_load_dwordx2 s[4:5], s[0:1], 96", "s_load_dwordx4 s[8:11], s[0:1], 56")
    D.init(); D.stamp(0)
    e(f"v_and_b32 v{vLANE}, 63, v0", f"v_lshrrev_b32 v{vT0}, 6, v0", "s_nop 0", f"v_readfirstlane_b32 s{sW}, v{vT0}")
    e(f"s_and_b32 s{sT}, s2, 7", f"s_lshr_b32 s{sT+1}, s2, 3", f"s_and_b32 s{sJ}, s{sT+1}, 7", f"s_lshr_b32 s{sI}, s{sT+1}, 3", f"s_lshl_b32 s{sI}, s{sI}, 3", f"s_add_u32 s{sI}, s{sI}, s{sT}")
    e(f"s_and_b32 s{sA}, s{sW}, 3", f"s_mov_b32 s{sEX}, 0x0000ffff", f"s_mov_b32 s{sEX+1}, 0x0000ffff")
    e("s_waitcnt lgkmcnt(0)")
    e(srd(SRD_WS, 4, WS_END), srd(SRD_WSP, 8, 2048*4096), srd(SRD_BSP, 10, 4096))
    def kv_fill(phase):
        e(f"v_lshlrev_b32 v{vT0}, 4, v{vLANE}", f"s_lshl_b32 s{sT}, s{sA}, 15")
        if phase == 0: cnt = 8
        else:
            e(f"s_add_u32 s{sT}, s{sT}, 8192"); cnt = 24
        e(f"s_add_u32 s{sT+1}, s{sT}, {WS_KF}")
        for n in range(cnt):
            e(f"s_add_u32 m0, s{sT}, {n*1024}", f"s_add_u32 s{sT+2}, s{sT+1}, {n*1024}", f"buffer_load_dwordx4 v{vT0}, {WSR}, s{sT+2} offen lds")
    e(f"s_cmp_ge_u32 s{sW}, 4", f"s_cbranch_scc1 L_{name}_B")

    Q = [8, 12, 16, 20]; O = [24, 40, 56, 72]; S = [88, 104]; K = [120, 124]; V = [128, 136]
    vKA, vVA = 6, 7
    vM = [144, 145, 146, 147]
    vX = 148
    e(f"s_and_b32 s{sT}, s{sA}, 1", f"s_lshr_b32 s{sKAP}, s{sA}, 1", f"s_lshl_b32 s{sTBG}, s{sI}, 1", f"s_add_u32 s{sTBG}, s{sTBG}, s{sT}")
    kv_fill(0)
    e(f"s_lshl_b32 s{sT}, s{sTBG}, 5", f"s_lshl_b32 s{sT+1}, s{sJ}, 2", f"s_add_u32 s{sT}, s{sT}, s{sT+1}", f"s_lshl_b32 s{sQO}, s{sT}, 10", f"s_add_u32 s{sT}, s{sQO}, {WS_QF}")
    e(f"v_lshlrev_b32 v{vT0}, 4, v{vLANE}")
    for q in range(4): e(f"buffer_load_dwordx4 {vr(Q[q],4)}, v{vT0}, {WSR}, s{sT} offen offset:{q*1024}")
    e(f"v_and_b32 v{vT1}, 31, v{vLANE}", f"v_lshlrev_b32 v{vT1}, 2, v{vT1}", f"s_lshl_b32 s{sT}, s{sKAP}, 7", f"s_add_u32 s{sT}, s{sT}, {WS_NRM}",
      f"buffer_load_dword v{vT2}, v{vT1}, {WSR}, s{sT} offen", f"buffer_load_dword v{vT3}, v{vT1}, {WSR}, s{sT} offen offset:256")
    D.stamp(8)
    for q in range(4):
        for i in range(16): e(f"v_mov_b32 v{O[q]+i}, 0")
        e(f"v_mov_b32 v{vM[q]}, 0")
    for i in range(16): e(f"v_mov_b32 v{S[1]+i}, 0")
    e(f"v_and_b32 v{vKA}, 31, v{vLANE}", f"v_cmp_eq_u32 vcc, 16, v{vKA}", f"v_mov_b32 v{vVA}, 0x3f803f80", "s_nop 0")
    for b in range(2):
        for i in range(8): e(f"v_cndmask_b32 v{V[b]+i}, 0, v{vVA}, vcc")
    e(f"s_lshl_b32 s{sT}, s{sKAP}, 15", f"v_lshlrev_b32 v{vKA}, 4, v{vLANE}", f"v_add_u32 v{vKA}, s{sT}, v{vKA}",
      f"v_and_b32 v{vVA}, 15, v{vLANE}", f"v_lshlrev_b32 v{vVA}, 4, v{vVA}", f"v_lshrrev_b32 v{vT0}, 5, v{vLANE}", f"v_lshlrev_b32 v{vT0}, 8, v{vT0}",
      f"v_add_u32 v{vVA}, v{vVA}, v{vT0}", f"s_add_u32 s{sT}, s{sT}, {LDS_V}", f"v_add_u32 v{vVA}, s{sT}, v{vVA}")
    D.stamp(9)
    e("s_waitcnt vmcnt(0)")
    D.stamp(10)
    QN = vX + 1
    QT = vX + 5
    for q in range(4): e(f"v_mov_b32 v{QN+q}, 0")
    for i in range(4):
        for q in range(4): e(f"v_dot2c_f32_bf16 v{QN+q}, v{Q[q]+i}, v{Q[q]+i}")
    for q in range(4): e(f"v_mov_b32 v{QT+q}, v{QN+q}")
    e("s_nop 0")
    for q in range(4): e(f"v_permlane32_swap_b32 v{QT+q}, v{QN+q}")
    e("s_nop 0")
    for q in range(4): e(f"v_add_f32 v{QN+q}, v{QN+q}, v{QT+q}")
    e(f"v_max3_f32 v{vT0}, v{QN}, v{QN+1}, v{QN+2}", f"v_max_f32 v{vT0}, v{vT0}, v{QN+3}")
    R3 = (vT2, vT3, vT0)
    e("s_nop 0")
    for sh in (8, 4, 2, 1):
        for r in R3: e(f"v_max_f32_dpp v{r}, v{r}, v{r} row_ror:{sh} row_mask:0xf bank_mask:0xf")
    for sw in ("v_permlane16_swap_b32", "v_permlane32_swap_b32"):
        for n, r in enumerate(R3): e(f"v_mov_b32 v{QT+n}, v{r}")
        for n, r in enumerate(R3): e(f"{sw} v{QT+n}, v{r}")
        e("s_nop 0")
        for n, r in enumerate(R3): e(f"v_max_f32 v{r}, v{r}, v{QT+n}")
    e(f"v_mul_f32 v{vT0}, v{vT0}, v{vT2}",
      f"v_cmp_ge_f32 vcc, {fbits(9800.0)}, v{vT0}", f"v_cmp_ge_f32 s[{sT}:{sT+1}], {fbits(32768.0).replace('0x47000000','0x47000000')}, v{vT3}" if False else "s_nop 0")
    e(f"v_mov_b32 v{vX}, {fbits(32768.0)}", f"v_cmp_ge_f32 s[{sT}:{sT+1}], v{vX}, v{vT3}", "s_nop 1", f"s_and_b64 vcc, vcc, s[{sT}:{sT+1}]")
    e(f"s_mov_b64 s[{sT+2}:{sT+3}], vcc")
    D.stamp(1)
    e("s_barrier")
    D.stamp(2)
    e(f"s_cmp_eq_u64 s[{sT+2}:{sT+3}], exec", f"s_cbranch_scc0 L_{name}_slow")
    if cfg.get('force_slow'): e(f"s_branch L_{name}_slow")
    def kv_reads(b, kt_off):
        return [f"ds_read_b128 {vr(K[b],4)}, v{vKA} offset:{kt_off*1024}", f"s_mov_b64 exec, s[{sEX}:{sEX+1}]",
                f"ds_read_b128 {vr(V[b],4)}, v{vVA} offset:{kt_off*1024}", f"ds_read_b128 {vr(V[b]+4,4)}, v{vVA} offset:{kt_off*1024+512}", "s_mov_b64 exec, -1"]
    e(kv_reads(0, 0), "s_waitcnt lgkmcnt(0)")
    e(mfma32(vr(S[0],16), vr(K[0],4), vr(Q[0],4), "0"), nops(12))
    U = 16
    e(f"s_mov_b32 s{sCNT}, {128//U}")
    A.label(f"L_{name}_Af")
    for u in range(U):
        q = u % 4; ktl = u // 4; b = ktl % 2; cur = u % 2
        Sc = S[cur]; Sn = S[1-cur]
        qp = (q - 1) % 4; bp = b if q > 0 else 1 - b
        qn = (q + 1) % 4; bn = b if q < 3 else 1 - b
        E = lambda i: f"v_exp_f32 v{Sc+i}, v{Sc+i}"
        C = lambda i: f"v_cvt_pk_bf16_f32 v{Sc+i}, v{Sc+2*i}, v{Sc+2*i+1}"
        e(E(0), E(1))
        e(mfma32(vr(O[qp],16), vr(V[bp]+4,4), vr(Sn+4,4), vr(O[qp],16)))
        e(E(2), E(3))
        if q == 3: e("s_waitcnt lgkmcnt(0)")
        e(E(4))
        e(mfma32(vr(Sn,16), vr(K[bn],4), vr(Q[qn],4), "0"))
        if q == 1: e(kv_reads(1-b, ktl+1))
        e(E(5), E(6), E(7), C(0), C(1), C(2), C(3), E(8), E(9))
        e(mfma32(vr(O[q],16), vr(V[b],4), vr(Sc,4), vr(O[q],16)))
        e([E(i) for i in range(10, 16)], [C(i) for i in range(4, 8)])
    e(f"v_add_u32 v{vKA}, {U//4*1024}, v{vKA}", f"v_add_u32 v{vVA}, {U//4*1024}, v{vVA}")
    e(f"s_sub_u32 s{sCNT}, s{sCNT}, 1", f"s_cmp_eq_u32 s{sCNT}, 7", f"s_cbranch_scc1 L_{name}_Ab1", f"s_cmp_eq_u32 s{sCNT}, 1", f"s_cbranch_scc1 L_{name}_Ab2",
      f"s_cmp_lg_u32 s{sCNT}, 0", f"s_cbranch_scc1 L_{name}_Af")
    e("s_nop 1", mfma32(vr(O[3],16), vr(V[1]+4,4), vr(S[1]+4,4), vr(O[3],16)))
    e(f"s_branch L_{name}_Acomb")
    A.label(f"L_{name}_Ab1")
    e("s_barrier", f"s_branch L_{name}_Af")
    A.label(f"L_{name}_Ab2")
    e("s_barrier", f"s_branch L_{name}_Af")
    A.label(f"L_{name}_slow")
    for q in range(4): e(f"v_mov_b32 v{vM[q]}, {fbits(-1e30)}")
    e("s_barrier")
    e(f"s_mov_b32 s{sCNT}, 32")
    A.label(f"L_{name}_As")
    e(kv_reads(0, 0), "s_waitcnt lgkmcnt(0)")
    for q in range(4):
        Sc = S[0]
        e(mfma32(vr(Sc,16), vr(K[0],4), vr(Q[q],4), "0"), nops(14))
        e(f"v_max3_f32 v{vT0}, v{Sc}, v{Sc+1}, v{Sc+2}")
        for i in range(3, 15, 2): e(f"v_max3_f32 v{vT0}, v{Sc+i}, v{Sc+i+1}, v{vT0}")
        e(f"v_max_f32 v{vT0}, v{Sc+15}, v{vT0}", f"v_mov_b32 v{vT1}, v{vT0}", "s_nop 1", f"v_permlane32_swap_b32 v{vT1}, v{vT0}", "s_nop 1",
          f"v_max3_f32 v{vT0}, v{vT0}, v{vT1}, v{vM[q]}", f"v_sub_f32 v{vT1}, v{vM[q]}, v{vT0}", f"v_exp_f32 v{vT1}, v{vT1}", f"v_mov_b32 v{vM[q]}, v{vT0}")
        for i in range(16): e(f"v_sub_f32 v{Sc+i}, v{Sc+i}, v{vT0}")
        for i in range(16): e(f"v_exp_f32 v{Sc+i}, v{Sc+i}")
        for i in range(9): e(f"v_mul_f32 v{O[q]+i}, v{O[q]+i}, v{vT1}")
        for i in range(8): e(f"v_cvt_pk_bf16_f32 v{Sc+i}, v{Sc+2*i}, v{Sc+2*i+1}")
        e("s_nop 1", mfma32(vr(O[q],16), vr(V[0],4), vr(Sc,4), vr(O[q],16)), mfma32(vr(O[q],16), vr(V[0]+4,4), vr(Sc+4,4), vr(O[q],16)), nops(4))
    e(f"v_add_u32 v{vKA}, 1024, v{vKA}", f"v_add_u32 v{vVA}, 1024, v{vVA}", nops(10))
    e(f"s_sub_u32 s{sCNT}, s{sCNT}, 1", f"s_cmp_eq_u32 s{sCNT}, 4", f"s_cbranch_scc0 L_{name}_As2", "s_barrier")
    A.label(f"L_{name}_As2")
    e(f"s_cmp_lg_u32 s{sCNT}, 0", f"s_cbranch_scc1 L_{name}_As")
    A.label(f"L_{name}_Acomb")
    e(nops(16))
    D.stamp(3)
    for q in range(4):
        e(f"v_mov_b32 v{vT0}, v{O[q]+8}", "s_nop 1", f"v_permlane32_swap_b32 v{O[q]+8}, v{vT0}", "s_nop 1")
        e(f"v_mov_b32 v{O[q]+9}, v{vM[q]}")
    e("s_barrier")
    D.stamp(4)
    e(f"s_lshl_b32 s{sT}, s{sA}, 15", f"s_add_u32 s{sT}, s{sT}, 24576", f"s_xor_b32 s{sT+1}, s{sA}, 2", f"s_lshl_b32 s{sT+1}, s{sT+1}, 15", f"s_add_u32 s{sT+1}, s{sT+1}, 24576",
      f"v_lshlrev_b32 v{vT0}, 4, v{vLANE}", f"v_add_u32 v{vT1}, s{sT+1}, v{vT0}", f"v_add_u32 v{vT0}, s{sT}, v{vT0}",
      f"v_lshlrev_b32 v{vT2}, 3, v{vLANE}", f"v_add_u32 v{vT3}, s{sT+1}, v{vT2}", f"v_add_u32 v{vT2}, s{sT}, v{vT2}")
    e(f"s_cmp_eq_u32 s{sKAP}, 0", f"s_cbranch_scc0 L_{name}_k1")
    for kap in range(2):
        if kap == 1: A.label(f"L_{name}_k1")
        send = [2*(1-kap), 2*(1-kap)+1]; keep = [2*kap, 2*kap+1]
        for n, q in enumerate(send):
            e(f"ds_write_b128 v{vT0}, {vr(O[q],4)} offset:{XA_BASE + n*2560}", f"ds_write_b128 v{vT0}, {vr(O[q]+4,4)} offset:{XA_BASE + n*2560 + 1024}",
              f"ds_write_b64 v{vT2}, {vr(O[q]+8,2)} offset:{XA_BASE + n*2560 + 2048}")
        e("s_waitcnt lgkmcnt(0)", "s_barrier")
        for n, q in enumerate(keep):
            X = vX
            e(f"ds_read_b128 {vr(X,4)}, v{vT1} offset:{XA_BASE + n*2560}", f"ds_read_b128 {vr(X+4,4)}, v{vT1} offset:{XA_BASE + n*2560 + 1024}",
              f"ds_read_b64 {vr(X+8,2)}, v{vT3} offset:{XA_BASE + n*2560 + 2048}", "s_waitcnt lgkmcnt(0)")
            e(f"v_max_f32 v{X+10}, v{O[q]+9}, v{X+9}", f"v_sub_f32 v{X+11}, v{O[q]+9}, v{X+10}", f"v_sub_f32 v{X+12}, v{X+9}, v{X+10}",
              f"v_exp_f32 v{X+11}, v{X+11}", f"v_exp_f32 v{X+12}, v{X+12}", "s_nop 0")
            e(f"v_mul_f32 v{X+13}, v{O[q]+8}, v{X+11}", f"v_fma_f32 v{X+13}, v{X+8}, v{X+12}, v{X+13}", f"v_rcp_f32 v{X+13}, v{X+13}", "s_nop 0",
              f"v_mul_f32 v{X+11}, v{X+11}, v{X+13}", f"v_mul_f32 v{X+12}, v{X+12}, v{X+13}")
            for i in range(8): e(f"v_mul_f32 v{O[q]+i}, v{O[q]+i}, v{X+11}", f"v_fma_f32 v{O[q]+i}, v{X+i}, v{X+12}, v{O[q]+i}")
            for p in range(4): e(f"v_cvt_pk_bf16_f32 v{O[q]+p}, v{O[q]+2*p}, v{O[q]+2*p+1}")
            e(f"s_mul_i32 s{sT+2}, s{sTBG}, 88", f"s_lshl_b32 s{sT+3}, s{sJ}, 2", f"s_add_u32 s{sT+2}, s{sT+2}, s{sT+3}", f"s_add_u32 s{sT+2}, s{sT+2}, {q}",
              f"s_lshl_b32 s{sT+2}, s{sT+2}, 10", f"s_add_u32 s{sT+2}, s{sT+2}, {WS_ACT}", f"v_lshlrev_b32 v{X+14}, 4, v{vLANE}",
              f"buffer_store_dwordx4 {vr(O[q],4)}, v{X+14}, {WSR}, s{sT+2} offen")
        e(f"s_branch L_{name}_done")

    A.label(f"L_{name}_B")
    ACC = 12; Z = ACC + 128; W = Z + 64
    vZO, vW0, vW1 = 6, 7, 8
    vWR = [9, 10, 11, 236]
    vB = 237
    vZ1 = Z
    e("s_setprio 3")
    e(f"s_cmp_eq_u32 s{sJ}, 7", f"s_cbranch_scc1 L_{name}_Bidle")
    if cfg.get('Bidle'): e(f"s_branch L_{name}_Bidle")
    sKS = sTBG
    e(f"s_lshl_b32 s{sKS}, s{sI}, 2", f"s_add_u32 s{sKS}, s{sKS}, s{sA}")
    PS = W
    RAW = Z
    e(f"s_lshr_b32 s{sT}, s{sKS}, 1", f"s_lshl_b32 s{sT}, s{sT}, 12", f"s_and_b32 s{sT+1}, s{sKS}, 1", f"s_lshl_b32 s{sT+1}, s{sT+1}, 7", f"s_add_u32 s{sT}, s{sT}, s{sT+1}", f"s_add_u32 s{sT}, s{sT}, {WS_ST}",
      f"v_lshrrev_b32 v{vT1}, 4, v{vLANE}", f"v_lshlrev_b32 v{vT1}, 8, v{vT1}", f"v_and_b32 v{vT2}, 15, v{vLANE}", f"v_lshlrev_b32 v{vT2}, 3, v{vT2}", f"v_add_u32 v{vT1}, v{vT1}, v{vT2}")
    for n in range(4): e(f"buffer_load_dwordx2 {vr(PS+2*n,2)}, v{vT1}, {WSR}, s{sT} offen offset:{n*1024}")
    e(f"s_mul_i32 s{sT}, s{sKS}, 28", f"s_lshl_b32 s{sT+1}, s{sJ}, 2", f"s_add_u32 s{sT}, s{sT}, s{sT+1}", f"s_lshl_b32 s{sQO}, s{sT}, 10", f"s_add_u32 s{sT}, s{sQO}, {WS_Z2R}",
      f"v_lshlrev_b32 v{vZO}, 4, v{vLANE}")
    for fb in range(4): e(f"buffer_load_dwordx4 {vr(RAW+4*fb,4)}, v{vZO}, {WSR}, s{sT} offen offset:{fb*1024}")
    e(f"s_lshl_b32 s{sLB}, s{sA}, 13", f"s_add_u32 s{sLB}, s{sLB}, {LDS_BOUNCE}")
    e(f"v_lshrrev_b32 v{vW0}, 3, v{vLANE}", f"v_lshrrev_b32 v{vT0}, 4, v{vLANE}", f"v_xor_b32 v{vT0}, v{vT0}, v{vLANE}", f"v_and_b32 v{vT0}, 7, v{vT0}", f"v_lshlrev_b32 v{vT0}, 4, v{vT0}",
      f"v_lshlrev_b32 v{vW0}, 12, v{vW0}", f"v_add_u32 v{vW0}, v{vW0}, v{vT0}",
      f"s_lshl_b32 s{sT}, s{sI}, 18", f"s_lshl_b32 s{sT+1}, s{sA}, 10", f"s_add_u32 s{sT}, s{sT}, s{sT+1}", f"v_add_u32 v{vW0}, s{sT}, v{vW0}", f"v_xor_b32 v{vW1}, 64, v{vW0}")
    e(f"v_and_b32 v{vT0}, 31, v{vLANE}", f"v_lshrrev_b32 v{vT1}, 1, v{vT0}", f"v_and_b32 v{vT1}, 7, v{vT1}", f"v_lshrrev_b32 v{vT2}, 5, v{vLANE}", f"v_xor_b32 v{vT1}, v{vT1}, v{vT2}",
      f"v_lshlrev_b32 v{vT1}, 4, v{vT1}", f"v_lshlrev_b32 v{vT0}, 7, v{vT0}", f"v_add_u32 v{vT0}, v{vT0}, v{vT1}", f"v_add_u32 v{vWR[0]}, s{sLB}, v{vT0}")
    for ks in range(1, 4): e(f"v_xor_b32 v{vWR[ks]}, {32*ks}, v{vWR[0]}")
    for i in range(128): e(f"v_mov_b32 v{ACC+i}, 0")
    e("s_barrier")
    D.stamp(1)
    e("s_waitcnt vmcnt(4)")
    e(f"v_add_f32 v{PS}, v{PS}, v{PS+2}", f"v_add_f32 v{PS+1}, v{PS+1}, v{PS+3}", f"v_add_f32 v{PS+4}, v{PS+4}, v{PS+6}", f"v_add_f32 v{PS+5}, v{PS+5}, v{PS+7}",
      f"v_add_f32 v{PS}, v{PS}, v{PS+4}", f"v_add_f32 v{PS+1}, v{PS+1}, v{PS+5}")
    for r in (PS, PS+1):
        e(f"v_mov_b32 v{vT0}, v{r}", "s_nop 1", f"v_permlane16_swap_b32 v{vT0}, v{r}", "s_nop 1", f"v_add_f32 v{r}, v{r}, v{vT0}",
          f"v_mov_b32 v{vT0}, v{r}", "s_nop 1", f"v_permlane32_swap_b32 v{vT0}, v{r}", "s_nop 1", f"v_add_f32 v{r}, v{r}, v{vT0}")
    e(f"v_mul_f32 v{PS}, {fbits(1/896)}, v{PS}", f"v_mul_f32 v{PS+1}, {fbits(1/896)}, v{PS+1}", f"v_fma_f32 v{PS+1}, -v{PS}, v{PS}, v{PS+1}", f"v_max_f32 v{PS+1}, 0, v{PS+1}",
      f"v_add_f32 v{PS+1}, {fbits(1e-5)}, v{PS+1}", f"v_rsq_f32 v{PS+1}, v{PS+1}", "s_nop 0", f"v_mul_f32 v{PS}, v{PS}, v{PS+1}", f"v_sub_f32 v{PS}, 0, v{PS}")
    e("s_nop 1", f"v_mov_b32_dpp v{PS}, v{PS} row_ror:8 row_mask:0xc bank_mask:0xf", f"v_mov_b32_dpp v{PS+1}, v{PS+1} row_ror:8 row_mask:0xc bank_mask:0xf", "s_nop 1")
    RB = W + 8; CB = W + 16
    for jx in range(8):
        e(f"v_mov_b32_dpp v{RB+jx}, v{PS+1} row_newbcast:{jx} row_mask:0xf bank_mask:0xf", f"v_mov_b32_dpp v{CB+jx}, v{PS} row_newbcast:{jx} row_mask:0xf bank_mask:0xf")
    e("s_waitcnt vmcnt(0)")
    TT = W + 24
    for fb in range(4):
        for p in range(4):
            R_ = RAW + 4*fb + p
            e(f"v_lshlrev_b32 v{TT}, 16, v{R_}", f"v_and_b32 v{TT+1}, 0xffff0000, v{R_}",
              f"v_fma_f32 v{TT}, v{TT}, v{RB+2*p}, v{CB+2*p}", f"v_fma_f32 v{TT+1}, v{TT+1}, v{RB+2*p+1}, v{CB+2*p+1}",
              f"v_cvt_pk_bf16_f32 v{R_}, v{TT}, v{TT+1}")
    e(f"s_add_u32 s{sT}, s{sQO}, {WS_Z2N}")
    for fb in range(4): e(f"buffer_store_dwordx4 {vr(RAW+4*fb,4)}, v{vZO}, {WSR}, s{sT} offen offset:{fb*1024} sc0 sc1")
    def wdma():
        o = []
        for n in range(8):
            o.append([f"s_add_u32 m0, s{sLB}, {n*1024}", f"s_add_u32 s{sT2}, s{sWO}, {n*32768}", f"buffer_load_dwordx4 v{vW0 if n % 2 == 0 else vW1}, s[{SRD_WSP}:{SRD_WSP+3}], s{sT2} offen lds"])
        o[-1] += [f"s_add_u32 s{sWO}, s{sWO}, 128", f"s_min_u32 s{sWO}, s{sWO}, {7*128}"]
        return o
    def zload(zb, fb): return [f"buffer_load_dwordx4 {vr(Z + 16*zb + 4*fb,4)}, v{vZO}, {WSR}, s{sZ} offen offset:{fb*1024} sc1"] + ([f"s_add_u32 s{sZ}, s{sZ}, 28672"] if fb == 3 else [])
    def wread(ks, tb): return f"ds_read_b128 {vr(W + 8*ks + 4*tb, 4)}, v{vWR[ks]} offset:{tb*4096}"
    def mm(zb, fb, tb, ks): a_ = ACC + 16*(fb*2+tb); return mfma32(vr(a_,16), vr(Z+16*zb+4*fb,4), vr(W+8*ks+4*tb,4), vr(a_,16))
    e(f"s_mov_b32 s{sWO}, 0")
    kv_fill(1)
    e("s_waitcnt vmcnt(24)")
    e(f"s_lshl_b32 s{sT}, s{sJ}, 9", f"s_lshl_b32 s{sT+1}, s{sKS}, 2", f"s_add_u32 s{sT}, s{sT}, s{sT+1}", f"s_add_u32 s{sT}, s{sT}, {WS_FLG}",
      f"v_mov_b32 v{vT0}, 0", f"v_mov_b32 v{vT1}, 1", f"buffer_store_dword v{vT1}, v{vT0}, {WSR}, s{sT} offen sc0 sc1")
    e(wdma())
    e("s_waitcnt vmcnt(9)", "s_barrier")
    D.stamp(2)
    e(f"s_lshl_b32 s{sT}, s{sJ}, 9", f"s_lshl_b32 s{sT+1}, s{sA}, 7", f"s_add_u32 s{sT}, s{sT}, s{sT+1}", f"s_add_u32 s{sT}, s{sT}, {WS_FLG}",
      f"v_and_b32 v{vT0}, 31, v{vLANE}", f"v_lshlrev_b32 v{vT0}, 2, v{vT0}", f"s_mov_b32 s{sCNT}, {SPIN_MAX}")
    A.label(f"L_{name}_poll")
    e(f"buffer_load_dword v{vT1}, v{vT0}, {WSR}, s{sT} offen sc0 sc1", "s_waitcnt vmcnt(0)", f"v_cmp_ne_u32 vcc, 1, v{vT1}", f"s_sub_u32 s{sCNT}, s{sCNT}, 1",
      f"s_cbranch_vccz L_{name}_pollok", f"s_cmp_eq_u32 s{sCNT}, 0", f"s_cbranch_scc1 L_{name}_pollok", "s_sleep 1", f"s_branch L_{name}_poll")
    A.label(f"L_{name}_pollok")
    D.stamp(3)
    e(f"s_mul_i32 s{sZ}, s{sA}, {32*28*1024}", f"s_lshl_b32 s{sT}, s{sJ}, 12", f"s_add_u32 s{sZ}, s{sZ}, s{sT}", f"s_add_u32 s{sZ}, s{sZ}, {WS_Z2N}")
    for zb in range(4):
        for fb in range(4): e(zload(zb, fb))
    for ks in range(4):
        for tb in range(2): e(wread(ks, tb))
    e("s_waitcnt lgkmcnt(0)")
    e(wdma())
    e(f"s_mov_b32 s{sCNT}, 8", f"s_setprio {cfg.get('prioB', 0)}")
    A.label(f"L_{name}_Bl")
    for jx in range(4):
        zb = jx
        if jx < 3: e("s_waitcnt vmcnt(20)")
        else: e("s_waitcnt vmcnt(12)")
        for fb in range(4):
            if not cfg.get('noM'): e(mm(zb, fb, 0, jx), mm(zb, fb, 1, jx))
            if not cfg.get('noZ'): e(zload(zb, fb))
            if jx == 3 and fb < 3 and not cfg.get('noWR'): e(wread(fb, 0), wread(fb, 1))
        if jx == 3:
            if not cfg.get('noWR'): e(wread(3, 0), wread(3, 1))
            e("s_waitcnt lgkmcnt(0)")
            if not cfg.get('noW'): e(wdma())
    e(f"s_sub_u32 s{sCNT}, s{sCNT}, 1", f"s_cmp_lg_u32 s{sCNT}, 0", f"s_cbranch_scc1 L_{name}_Bl")
    e("s_setprio 3", "s_waitcnt vmcnt(0)")
    D.stamp(4)
    e(f"s_lshl_b32 s{sT}, s{sI}, 1", f"s_mul_i32 s{sT}, s{sT}, 28", f"s_lshl_b32 s{sT+1}, s{sJ}, 2", f"s_add_u32 s{sT}, s{sT}, s{sT+1}", f"s_add_u32 s{sT}, s{sT}, s{sA}",
      f"s_lshl_b32 s{sT}, s{sT}, 11", f"s_add_u32 s{sT}, s{sT}, {WS_Z1}", f"s_add_u32 s{sT+1}, s{sT}, {28*2048}")
    for tb in range(2):
        for m in range(2): e(f"buffer_load_dwordx4 {vr(vZ1 + 8*tb + 4*m,4)}, v{vZO}, {WSR}, s{sT+tb} offen offset:{m*1024}")
    e(f"v_and_b32 v{vT0}, 31, v{vLANE}", f"v_lshlrev_b32 v{vT0}, 1, v{vT0}", f"s_lshl_b32 s{sT}, s{sI}, 7")
    for tb in range(2): e(f"buffer_load_ushort v{vB+tb}, v{vT0}, s[{SRD_BSP}:{SRD_BSP+3}], s{sT} offen offset:{tb*64}")
    e(f"v_lshlrev_b32 v{vT0}, 4, v{vLANE}")
    e("s_barrier")
    D.stamp(5)
    for bb in range(4):
        e(f"s_cmp_eq_u32 s{sA}, {bb}", f"s_cbranch_scc0 L_{name}_Bs{bb}")
        for d in range(4):
            if d == bb: continue
            pos = (bb - d - 1) & 3
            base = d*32768 + pos*8192
            e(f"v_add_u32 v{vT1}, {base}, v{vT0}" if base else f"v_mov_b32 v{vT1}, v{vT0}")
            for tb in range(2):
                for g in range(4): e(f"ds_write_b128 v{vT1}, {vr(ACC + 16*(d*2+tb) + 4*g, 4)} offset:{tb*4096 + g*1024}")
        e("s_waitcnt lgkmcnt(0)", "s_barrier", "s_barrier")
        e(f"v_add_u32 v{vT1}, {bb*32768}, v{vT0}" if bb else f"v_mov_b32 v{vT1}, v{vT0}")
        X = Z + 16
        for tb in range(2):
            a_ = ACC + 16*(bb*2+tb)
            for pos in range(3):
                for g in range(4): e(f"ds_read_b128 {vr(X+16*pos+4*g,4)}, v{vT1} offset:{pos*8192 + tb*4096 + g*1024}")
            for pos in range(3):
                e(f"s_waitcnt lgkmcnt({8-4*pos})")
                for p in range(8): e(f"v_pk_add_f32 {vr(a_+2*p,2)}, {vr(a_+2*p,2)}, {vr(X+16*pos+2*p,2)}")
            e("s_waitcnt vmcnt(0)" if tb == 0 else "s_nop 0")
            e(f"v_lshlrev_b32 v{vT2}, 16, v{vB+tb}")
            for p in range(8): e(f"v_pk_add_f32 {vr(a_+2*p,2)}, {vr(a_+2*p,2)}, {vr(vT2,2)} op_sel_hi:[1,0]")
            for p in range(8):
                zr = vZ1 + 8*tb + p
                e(f"v_lshlrev_b32 v{X}, 16, v{zr}", f"v_and_b32 v{X+1}, 0xffff0000, v{zr}", f"v_pk_mul_f32 {vr(X,2)}, {vr(X,2)}, {vr(a_+2*p,2)}",
                  f"v_cvt_pk_bf16_f32 v{zr}, v{X}, v{X+1}")
            e(f"s_lshl_b32 s{sT}, s{sI}, 1", f"s_add_u32 s{sT}, s{sT}, {tb}", f"s_mul_i32 s{sT}, s{sT}, 88", f"s_lshl_b32 s{sT+1}, s{sJ}, 3", f"s_add_u32 s{sT}, s{sT}, s{sT+1}",
              f"s_add_u32 s{sT}, s{sT}, {32 + 2*bb}", f"s_lshl_b32 s{sT}, s{sT}, 10", f"s_add_u32 s{sT}, s{sT}, {WS_ACT}")
            for m in range(2): e(f"buffer_store_dwordx4 {vr(vZ1 + 8*tb + 4*m,4)}, v{vZO}, {WSR}, s{sT} offen offset:{m*1024}")
        e(f"s_branch L_{name}_done")
        A.label(f"L_{name}_Bs{bb}")
    e(f"s_branch L_{name}_done")
    A.label(f"L_{name}_Bidle")
    e("s_barrier")
    kv_fill(1)
    e("s_waitcnt vmcnt(0)", "s_barrier", "s_barrier", "s_barrier", "s_barrier")
    A.label(f"L_{name}_done")
    D.stamp(6)
    e("s_waitcnt vmcnt(0)")
    D.stamp(7)
    D.flush(4, sW)
    A.label(f"L_{name}_end")
    e("s_endpgm")
    return kernel_head(name) + A.text() + KD.format(name=name, vgpr=NV, sgpr=100, acc=NV)
```

```python
from asmlib import *

def gen_p3(name, cfg=None):
    cfg = cfg or {}
    A = Asm(); e = A.e
    D = Diag(A, cfg.get('diag'), 2)
    sX, sWO, sWOUT, sOUT, sWS = 4, 6, 8, 10, 12
    SRD_WS, SRD_X, SRD_OUT, SRD_WO, SRD_WOUT = 16, 20, 24, 28, 32
    sI, sJ, sW = 36, 37, 38
    sT = 40
    sACT, sLB = 48, 49
    WSR = f"s[{SRD_WS}:{SRD_WS+3}]"
    vLANE = 1; vT0, vT1, vT2 = 2, 3, 4
    vAO, vWG, vWR = 5, 6, 7
    ACC = 8
    AF = 72
    WF = 200
    XR = 216
    NV = 232
    NS = 15
    SLOTB = 2048
    e("s_cmp_ge_u32 s2, 256", f"s_cbranch_scc1 L_{name}_end")
    e("s_load_dwordx2 s[4:5], s[0:1], 0", "s_load_dwordx2 s[6:7], s[0:1], 32", "s_load_dwordx4 s[8:11], s[0:1], 72", "s_load_dwordx2 s[12:13], s[0:1], 96")
    D.init(); D.stamp(0)
    e(f"v_and_b32 v{vLANE}, 63, v0", f"v_lshrrev_b32 v{vT0}, 6, v0", "s_nop 0", f"v_readfirstlane_b32 s{sW}, v{vT0}")
    e(f"s_and_b32 s{sT}, s2, 7", f"s_lshr_b32 s{sT+1}, s2, 3", f"s_and_b32 s{sJ}, s{sT+1}, 7", f"s_lshr_b32 s{sI}, s{sT+1}, 3", f"s_lshl_b32 s{sI}, s{sI}, 3", f"s_add_u32 s{sI}, s{sI}, s{sT}")
    e("s_waitcnt lgkmcnt(0)")
    e(srd(SRD_WS, sWS, WS_END), srd(SRD_X, sX, 2048*1024), srd(SRD_OUT, sOUT, 2048*1024), srd(SRD_WO, sWO, 512*1024), srd(SRD_WOUT, sWOUT, 896*1024))
    e(f"s_lshl_b32 s{sT}, s{sI}, 1", f"s_mul_i32 s{sT}, s{sT}, 88", f"s_mul_i32 s{sT+1}, s{sW}, 22", f"s_add_u32 s{sT}, s{sT}, s{sT+1}", f"s_lshl_b32 s{sT}, s{sT}, 10", f"s_add_u32 s{sACT}, s{sT}, {WS_ACT}",
      f"v_lshlrev_b32 v{vAO}, 4, v{vLANE}")
    e(f"v_lshrrev_b32 v{vWG}, 2, v{vLANE}", f"v_lshlrev_b32 v{vWG}, 10, v{vWG}", f"v_and_b32 v{vT0}, 3, v{vLANE}", f"v_lshlrev_b32 v{vT0}, 4, v{vT0}", f"v_add_u32 v{vWG}, v{vWG}, v{vT0}",
      f"s_lshl_b32 s{sT}, s{sJ}, 7", f"v_add_u32 v{vWG}, s{sT}, v{vWG}")
    e(f"s_lshl_b32 s{sLB}, s{sW}, 15")
    e(f"v_lshrrev_b32 v{vWR}, 5, v{vLANE}", f"v_lshlrev_b32 v{vWR}, 2, v{vWR}", f"v_bfe_u32 v{vT0}, v{vLANE}, 2, 2", f"v_add_u32 v{vWR}, v{vWR}, v{vT0}", f"v_lshlrev_b32 v{vWR}, 6, v{vWR}",
      f"v_bfe_u32 v{vT0}, v{vLANE}, 4, 1", f"v_lshlrev_b32 v{vT0}, 5, v{vT0}", f"v_add_u32 v{vWR}, v{vWR}, v{vT0}", f"v_and_b32 v{vT0}, 3, v{vLANE}", f"v_lshlrev_b32 v{vT0}, 3, v{vT0}",
      f"v_add_u32 v{vWR}, v{vWR}, v{vT0}", f"v_add_u32 v{vWR}, s{sLB}, v{vWR}")
    def issue(st):
        slot = st % 16
        o = [f"s_mul_i32 s{sT}, s{sW}, 22", f"s_add_u32 s{sT}, s{sT}, {st}"]
        lab = A.new(f"L_{name}_w")
        o += [f"s_add_u32 m0, s{sLB}, {slot*SLOTB}", f"s_cmp_lt_u32 s{sT}, 32", f"s_cbranch_scc0 {lab}a",
              f"s_lshl_b32 s{sT+1}, s{sT}, 14",
              f"buffer_load_dwordx4 v{vWG}, s[{SRD_WO}:{SRD_WO+3}], s{sT+1} offen lds",
              f"s_add_u32 m0, s{sLB}, {slot*SLOTB + 1024}", f"s_add_u32 s{sT+1}, s{sT+1}, 64",
              f"buffer_load_dwordx4 v{vWG}, s[{SRD_WO}:{SRD_WO+3}], s{sT+1} offen lds",
              f"s_branch {lab}b", f"{lab}a:",
              f"s_sub_u32 s{sT+1}, s{sT}, 32", f"s_lshl_b32 s{sT+1}, s{sT+1}, 14",
              f"buffer_load_dwordx4 v{vWG}, s[{SRD_WOUT}:{SRD_WOUT+3}], s{sT+1} offen lds",
              f"s_add_u32 m0, s{sLB}, {slot*SLOTB + 1024}", f"s_add_u32 s{sT+1}, s{sT+1}, 64",
              f"buffer_load_dwordx4 v{vWG}, s[{SRD_WOUT}:{SRD_WOUT+3}], s{sT+1} offen lds",
              f"{lab}b:"]
        o += [f"s_add_u32 s{sT+2}, s{sACT}, {st*1024}", f"buffer_load_dwordx4 {vr(AF + 8*slot, 4)}, v{vAO}, {WSR}, s{sT+2} offen",
              f"s_add_u32 s{sT+2}, s{sT+2}, {88*1024}", f"buffer_load_dwordx4 {vr(AF + 8*slot + 4, 4)}, v{vAO}, {WSR}, s{sT+2} offen"]
        return o
    for st in range(NS): e(issue(st))
    D.stamp(1)
    for i in range(64): e(f"v_mov_b32 v{ACC+i}, 0")
    def wreads(st, buf):
        slot = st % 16
        return [f"ds_read_b64_tr_b16 {vr(WF + 8*buf + 4*nb + 2*hf, 2)}, v{vWR} offset:{slot*SLOTB + nb*1024 + hf*512}" for nb in range(2) for hf in range(2)]
    for st in range(22):
        buf = st % 2
        inflight = min(st + NS, 22) - st - 1
        if st == 0:
            e(f"s_waitcnt vmcnt({4*inflight})", wreads(0, 0))
        if st + 1 < 22:
            nin = min(st + NS, 22) - (st + 1) - 1
            e(f"s_waitcnt vmcnt({4*nin})", wreads(st+1, 1-buf), "s_waitcnt lgkmcnt(4)")
        else:
            e("s_waitcnt lgkmcnt(0)")
        slot = st % 16
        for nb in range(2):
            for tb in range(2):
                a_ = ACC + 16*(nb*2+tb)
                e(mfma32(vr(a_,16), vr(WF + 8*buf + 4*nb, 4), vr(AF + 8*slot + 4*tb, 4), vr(a_,16)))
        if st + NS < 22: e(issue(st + NS))
    D.stamp(2)
    e(f"v_lshrrev_b32 v{vT0}, 2, v0", f"s_lshl_b32 s{sT}, s{sI}, 6", f"v_add_u32 v{vT0}, s{sT}, v{vT0}", f"v_lshlrev_b32 v{vT0}, 10, v{vT0}", f"v_and_b32 v{vT1}, 3, v0", f"v_lshlrev_b32 v{vT1}, 5, v{vT1}",
      f"v_add_u32 v{vT0}, v{vT0}, v{vT1}", f"s_lshl_b32 s{sT}, s{sJ}, 7", f"v_add_u32 v{vT2}, s{sT}, v{vT0}")
    e(f"buffer_load_dwordx4 {vr(XR,4)}, v{vT2}, s[{SRD_X}:{SRD_X+3}], 0 offen", f"buffer_load_dwordx4 {vr(XR+4,4)}, v{vT2}, s[{SRD_X}:{SRD_X+3}], 0 offen offset:16")
    e(nops(16), "s_barrier")
    RS = 272; PB = 64*RS
    e(f"v_and_b32 v{vT0}, 31, v{vLANE}", f"v_mul_u32_u24 v{vT0}, {RS}, v{vT0}", f"v_lshrrev_b32 v{vT1}, 5, v{vLANE}", f"v_lshlrev_b32 v{vT1}, 4, v{vT1}", f"v_add_u32 v{vT0}, v{vT0}, v{vT1}",
      f"s_mul_i32 s{sT}, s{sW}, {PB}", f"v_add_u32 v{vT0}, s{sT}, v{vT0}")
    for nb in range(2):
        for tb in range(2):
            for g in range(4): e(f"ds_write_b128 v{vT0}, {vr(ACC + 16*(nb*2+tb) + 4*g, 4)} offset:{tb*32*RS + nb*128 + g*32}")
    e("s_waitcnt lgkmcnt(0)", "s_barrier")
    e(f"v_lshrrev_b32 v{vT0}, 2, v0", f"v_mul_u32_u24 v{vT0}, {RS}, v{vT0}", f"v_and_b32 v{vT1}, 3, v0", f"v_lshlrev_b32 v{vT1}, 6, v{vT1}", f"v_add_u32 v{vT0}, v{vT0}, v{vT1}")
    R0 = AF
    for w in range(4):
        if w*PB + 48 > 65535:
            e(f"v_add_u32 v{vT1}, {w*PB}, v{vT0}")
            for g in range(4): e(f"ds_read_b128 {vr(R0 + 16*w + 4*g, 4)}, v{vT1} offset:{g*16}")
        else:
            for g in range(4): e(f"ds_read_b128 {vr(R0 + 16*w + 4*g, 4)}, v{vT0} offset:{w*PB + g*16}")
    e("s_waitcnt lgkmcnt(0) vmcnt(0)")
    for p in range(8):
        e(f"v_pk_add_f32 {vr(R0+2*p,2)}, {vr(R0+2*p,2)}, {vr(R0+16+2*p,2)}", f"v_pk_add_f32 {vr(R0+32+2*p,2)}, {vr(R0+32+2*p,2)}, {vr(R0+48+2*p,2)}",
          f"v_pk_add_f32 {vr(R0+2*p,2)}, {vr(R0+2*p,2)}, {vr(R0+32+2*p,2)}")
    for p in range(8):
        xr = XR + p
        e(f"v_lshlrev_b32 v{vT0}, 16, v{xr}", f"v_and_b32 v{vT1}, 0xffff0000, v{xr}", f"v_add_f32 v{vT0}, v{vT0}, v{R0+2*p}", f"v_add_f32 v{vT1}, v{vT1}, v{R0+2*p+1}",
          f"v_cvt_pk_bf16_f32 v{xr}, v{vT0}, v{vT1}")
    e(f"buffer_store_dwordx4 {vr(XR,4)}, v{vT2}, s[{SRD_OUT}:{SRD_OUT+3}], 0 offen", f"buffer_store_dwordx4 {vr(XR+4,4)}, v{vT2}, s[{SRD_OUT}:{SRD_OUT+3}], 0 offen offset:16")
    D.stamp(3)
    e("s_waitcnt vmcnt(0)")
    D.stamp(4)
    D.flush(sWS, sW)
    A.label(f"L_{name}_end")
    e("s_endpgm")
    return kernel_head(name) + A.text() + KD.format(name=name, vgpr=NV, sgpr=100, acc=NV)
```

```python
from asmlib import *
from p1 import gen_p1
from p2 import gen_p2
from p3 import gen_p3
HEADER = open('parallel_sum__grouped_kv_mqa__mixer_gmlp__prompt.s.ref').read().split('; Override launch')[0] if False else ''
def full_asm(cfg1=None, cfg2=None, cfg3=None):
    s = "; generated by gen/build_all.py : three-launch pipeline (projections, attention + spatial gating, output projection)\n"
    s += "; @launch kernel=p1_kernel grid=(256,1,1) block=(512,1,1) lds=153600\n"
    s += "; @launch kernel=p2_kernel grid=(256,1,1) block=(512,1,1) lds=163840\n"
    s += "; @launch kernel=p3_kernel grid=(256,1,1) block=(256,1,1) lds=131072\n"
    s += '.amdgcn_target "amdgcn-amd-amdhsa--gfx950"\n'
    s += gen_p1('p1_kernel', cfg1) + gen_p2('p2_kernel', cfg2) + gen_p3('p3_kernel', cfg3)
    return s
if __name__ == '__main__':
    import sys
    out = sys.argv[1] if len(sys.argv) > 1 else 'parallel_sum__grouped_kv_mqa__mixer_gmlp__prompt.s'
    open(out, 'w').write(full_asm())
    print('written', out)
```

```python
class Asm:
    def __init__(self):
        self.L = []
        self.uid = 0
    def e(self, *xs):
        for x in xs:
            if isinstance(x, (list, tuple)):
                self.e(*x)
            else:
                for l in x.split("\n"):
                    l = l.strip()
                    if l: self.L.append(l)
    def label(self, name): self.L.append(name + ":")
    def new(self, base):
        self.uid += 1
        return f"{base}_{self.uid}"
    def text(self):
        return "\n".join(l if l.endswith(":") else "    " + l for l in self.L) + "\n"

def v(i): return f"v{i}"
def vr(b, n): return f"v[{b}:{b+n-1}]" if n > 1 else f"v{b}"
def a(i): return f"a{i}"
def ar(b, n): return f"a[{b}:{b+n-1}]" if n > 1 else f"a{b}"
def s(i): return f"s{i}"
def sr(b, n): return f"s[{b}:{b+n-1}]" if n > 1 else f"s{b}"

def mfma32(d, A, B, C):
    return f"v_mfma_f32_32x32x16_bf16 {d}, {A}, {B}, {C}"

def srd(dst, ptr, nbytes):
    return [f"s_mov_b32 s{dst}, s{ptr}", f"s_mov_b32 s{dst+1}, s{ptr+1}", f"s_mov_b32 s{dst+2}, {nbytes}", f"s_mov_b32 s{dst+3}, 0x00020000"]

def nops(n):
    out = []
    while n > 0:
        k = min(n, 16)
        out.append(f"s_nop {k-1}")
        n -= k
    return out

KD = """
.section .rodata,"a"
.p2align 6
.amdhsa_kernel {name}
  .amdhsa_next_free_vgpr {vgpr}
  .amdhsa_next_free_sgpr {sgpr}
  .amdhsa_accum_offset {acc}
  .amdhsa_group_segment_fixed_size 0
  .amdhsa_kernarg_size 104
  .amdhsa_user_sgpr_count 2
  .amdhsa_user_sgpr_kernarg_segment_ptr 1
  .amdhsa_system_sgpr_workgroup_id_x 1
  .amdhsa_float_denorm_mode_32 3
  .amdhsa_float_denorm_mode_16_64 3
.end_amdhsa_kernel
"""
def kernel_head(name):
    return f".text\n.globl {name}\n.p2align 8\n.type {name},@function\n{name}:\n"

WS_QF  = 0x000000
WS_KF  = 0x200000
WS_VF  = 0x210000
WS_NRM = 0x220000
WS_FLG = 0x221000
WS_FL3 = 0x222000
WS_FLA = 0x222000
WS_FLO = 0x22A000
WS_ST  = 0x240000
WS_Z1  = 0x280000
WS_Z2R = 0x600000
WS_Z2N = 0x980000
WS_ACT = 0xD00000
WS_END = 0xD00000 + 64*88*1024

WS_DIAG = 0x2000000
class Diag:
    def __init__(self, A, on, kid):
        self.A = A; self.on = on; self.kid = kid; self.n = 0
    remap = None
    def stamp(self, k):
        if not self.on: return
        if self.remap is not None:
            if k not in self.remap: return
            k = self.remap[k]
        self.n = max(self.n, k + 1)
        self.A.e("s_waitcnt lgkmcnt(0)", "s_memrealtime s[96:97]", "s_memtime s[98:99]", "s_waitcnt lgkmcnt(0)", f"s_mov_b32 s{64+2*k}, s96", f"s_mov_b32 s{65+2*k}, s98")
    def init(self):
        if not self.on: return
        for k in range(16): self.A.e(f"s_mov_b32 s{64+2*k}, 0", f"s_mov_b32 s{65+2*k}, 0")
    def flush(self, ws_ptr, wave_sgpr):
        if not self.on: return
        e = self.A.e
        e("s_waitcnt vmcnt(0) lgkmcnt(0)")
        e(f"s_mov_b32 s56, s{ws_ptr}", f"s_mov_b32 s57, s{ws_ptr+1}", "s_mov_b32 s58, 0x8000000", "s_mov_b32 s59, 0x00020000")
        e("s_lshl_b32 s60, s2, 4", f"s_add_u32 s60, s60, s{wave_sgpr}", "s_lshl_b32 s60, s60, 7", f"s_add_u32 s60, s60, {WS_DIAG + self.kid*0x80000}")
        e("v_mov_b32 v0, 0")
        for k in range(16):
            e(f"v_mov_b32 v2, s{64+2*k}", f"v_mov_b32 v3, s{65+2*k}", f"buffer_store_dwordx2 v[2:3], v0, s[56:59], s60 offen offset:{8*k}", "s_nop 1")
        e("s_waitcnt vmcnt(0)")
```

```python
from asmlib import *

SLOT = 36864
LDS_STATS = 147456
LDS_CS = LDS_STATS + 2048
C1 = -2.0 * 1.4426950408889634 * 0.7978845608028654
C3 = C1 * 0.044715
QSCALE = 0.25 * 1.4426950408889634

import struct
def fbits(x): return "0x%08x" % struct.unpack("<I", struct.pack("<f", x))[0]

def gelu_block(A, acc, T, vr_r, sC3, vC1):
    P = range(8)
    for p in P: A.e(f"v_pk_mul_f32 {vr(acc+2*p,2)}, {vr(acc+2*p,2)}, {vr(vr_r,2)} op_sel_hi:[1,0]")
    for p in P: A.e(f"v_pk_mul_f32 {vr(T+2*p,2)}, {vr(acc+2*p,2)}, {vr(acc+2*p,2)}")
    for p in P: A.e(f"v_pk_fma_f32 {vr(T+2*p,2)}, {vr(T+2*p,2)}, {sr(sC3,2)}, {vr(vC1,2)}")
    for p in P: A.e(f"v_pk_mul_f32 {vr(T+2*p,2)}, {vr(T+2*p,2)}, {vr(acc+2*p,2)}")
    for i in range(16): A.e(f"v_exp_f32 v{T+i}, v{T+i}")
    for p in P: A.e(f"v_pk_add_f32 {vr(T+2*p,2)}, {vr(T+2*p,2)}, 1.0 op_sel_hi:[1,0]")
    for i in range(16): A.e(f"v_rcp_f32 v{T+i}, v{T+i}")
    for p in P: A.e(f"v_pk_mul_f32 {vr(acc+2*p,2)}, {vr(acc+2*p,2)}, {vr(T+2*p,2)}")

def gen_p1(name, cfg=None, ctx=None):
    cfg = cfg or {}
    A = ctx['A'] if ctx else Asm(); e = A.e
    D = ctx['D'] if ctx else Diag(A, cfg.get('diag'), 0)
    SC = " sc0 sc1" if ctx else ""
    sX, sWQ, sWK, sWV, sWIN, sWS = 4, 6, 8, 10, 12, 14
    SRD_X, SRD_WS = 16, 20
    sI, sJ, sW, sTB, sROLE = 24, 25, 26, 27, 28
    sTMP = 29
    sC, sCUR, sNXT, sXOFF, sDST = 36, 37, 38, 39, 40
    sSTEP = 41
    sC3 = 44
    sTBG = 46
    sONES = 47
    sB = 48
    vLANE = 1
    vXO = [2, 3]
    vXB = [4, 5, 6, 7]
    vWB = [8, 9, 10, 11]
    vAX = 12; vAW = [13, 53, 13, 53]; vAW1 = 48; vAWQ = 49
    vQB = [128+2, 128+3, 140+1, 140+2]
    vT0, vT1 = 14, 15
    XF = [16, 20, 224, 228]
    WF = [[24 + 4*b for b in range(3)], [36 + 4*b for b in range(3)], [232 + 4*b for b in range(3)], [244 + 4*b for b in range(3)]]
    vCS = [48, 49, 50]
    vS1, vS2 = 51, 52
    mCS = [160, 176, 192]
    vQ1 = [208, 209]
    vQ2 = [210, 211]
    vU = [212, 213, 214, 215, 216, 217, 218, 219]
    vONE = 220
    vG = [54, 56, 58]
    vR = 60
    vMU = 62
    ACC = [64, 80, 96]
    TMP = 112
    vC1 = 128
    vCORB = 132
    vCORA = 136
    vST = 140
    vP = 144
    vTR = 152
    NV = 256

    if not ctx: e("s_cmp_ge_u32 s2, 256", f"s_cbranch_scc1 L_{name}_end")
    e(f"s_load_dwordx4 s[4:7], s[0:1], 0", f"s_load_dwordx4 s[8:11], s[0:1], 16", f"s_load_dwordx2 s[12:13], s[0:1], 48", f"s_load_dwordx2 s[14:15], s[0:1], 96")
    if not ctx: D.init()
    D.stamp(0)
    e(f"v_and_b32 v{vLANE}, 63, v0", f"v_lshrrev_b32 v{vT0}, 6, v0", "s_nop 0", f"v_readfirstlane_b32 s{sW}, v{vT0}")
    e(f"s_and_b32 s{sTMP}, s2, 7", f"s_lshr_b32 s{sTMP+1}, s2, 3",
      f"s_lshr_b32 s{sI}, s{sTMP}, 1", f"s_lshl_b32 s{sI}, s{sI}, 2", f"s_lshr_b32 s{sTMP+2}, s{sTMP+1}, 3", f"s_add_u32 s{sI}, s{sI}, s{sTMP+2}",
      f"s_and_b32 s{sJ}, s{sTMP}, 1", f"s_lshl_b32 s{sJ}, s{sJ}, 3", f"s_and_b32 s{sTMP+2}, s{sTMP+1}, 7", f"s_add_u32 s{sJ}, s{sJ}, s{sTMP+2}")
    e(f"s_and_b32 s{sTB}, s{sW}, 3", f"s_lshr_b32 s{sROLE}, s{sW}, 2")
    e(f"s_lshl_b32 s{sTBG}, s{sI}, 2", f"s_add_u32 s{sTBG}, s{sTBG}, s{sTB}")
    e(f"s_mov_b32 s{sONES}, 0x3f803f80", f"s_mov_b32 s{sC3}, {fbits(C3)}", f"s_mov_b32 s{sC3+1}, {fbits(C3)}")
    e(f"v_mov_b32 v{vC1}, {fbits(C1)}", f"v_mov_b32 v{vC1+1}, {fbits(C1)}")
    e(f"s_lshl_b32 s{sTMP}, s{sI}, 7", f"s_lshl_b32 s{sTMP+1}, s{sW}, 4", f"s_add_u32 s{sTMP}, s{sTMP}, s{sTMP+1}", f"s_lshl_b32 s{sTMP}, s{sTMP}, 10")
    for q in range(2):
        e(f"v_lshrrev_b32 v{vT0}, 4, v{vLANE}")
        if q: e(f"v_add_u32 v{vT0}, 4, v{vT0}")
        e(f"v_xor_b32 v{vT0}, v{vT0}, v{vLANE}", f"v_and_b32 v{vT0}, 7, v{vT0}", f"v_lshlrev_b32 v{vT0}, 4, v{vT0}",
          f"v_lshrrev_b32 v{vT1}, 3, v{vLANE}", f"v_lshlrev_b32 v{vT1}, 10, v{vT1}", f"v_add_u32 v{vT0}, v{vT0}, v{vT1}",
          f"v_add_u32 v{vXO[q]}, s{sTMP}, v{vT0}")
        if q: e(f"v_add_u32 v{vXO[q]}, 0x2000, v{vXO[q]}")
    e(f"v_and_b32 v{vT0}, 31, v{vLANE}", f"v_lshrrev_b32 v{vT1}, 1, v{vT0}", f"v_and_b32 v{vT1}, 7, v{vT1}",
      f"v_lshrrev_b32 v{vAX}, 5, v{vLANE}", f"v_xor_b32 v{vT1}, v{vT1}, v{vAX}", f"v_lshlrev_b32 v{vT1}, 4, v{vT1}",
      f"v_lshlrev_b32 v{vT0}, 7, v{vT0}", f"v_add_u32 v{vT0}, v{vT0}, v{vT1}", f"s_lshl_b32 s{sTMP}, s{sTB}, 12", f"v_add_u32 v{vT0}, s{sTMP}, v{vT0}")
    e(f"v_lshrrev_b32 v{vT1}, 5, v{vLANE}", f"v_lshlrev_b32 v{vT1}, 3, v{vT1}", f"v_bfe_u32 v{vAW[0]}, v{vLANE}, 2, 2", f"v_add_u32 v{vT1}, v{vT1}, v{vAW[0]}",
      f"v_bfe_u32 v{vAW1}, v{vLANE}, 4, 1", f"v_lshlrev_b32 v{vAW1}, 5, v{vAW1}", f"v_and_b32 v{vAWQ}, 3, v{vLANE}", f"v_lshlrev_b32 v{vAWQ}, 3, v{vAWQ}", f"v_add_u32 v{vAW1}, v{vAW1}, v{vAWQ}",
      f"v_lshlrev_b32 v{vAWQ}, 6, v{vT1}", f"v_add_u32 v{vAWQ}, v{vAWQ}, v{vAW1}",
      f"v_lshlrev_b32 v{vT1}, 7, v{vT1}", f"v_add_u32 v{vT1}, v{vT1}, v{vAW1}", f"v_bfe_u32 v{vAW1}, v{vLANE}, 3, 1", f"v_lshlrev_b32 v{vAW1}, 6, v{vAW1}", f"v_add_u32 v{vT1}, v{vT1}, v{vAW1}")
    for sp in range(4):
        e(f"s_add_u32 s{sTMP}, s{sTB}, {sp}", f"s_and_b32 s{sTMP}, s{sTMP}, 3", f"s_lshl_b32 s{sTMP+1}, s{sTMP}, 5", f"s_lshl_b32 s{sTMP+2}, s{sTMP}, 11", f"s_lshl_b32 s{sTMP+3}, s{sTMP}, 10",
          f"v_xor_b32 v{vXB[sp]}, s{sTMP+1}, v{vT0}", f"v_add_u32 v{vWB[sp]}, s{sTMP+2}, v{vT1}", f"v_add_u32 v{vQB[sp]}, s{sTMP+3}, v{vAWQ}")
    e("s_waitcnt lgkmcnt(0)")
    e(srd(SRD_X, sX, 2048*1024), srd(SRD_WS, sWS, WS_END))
    vROW, vPC = vXB[0] + 0, vXB[1] + 0
    vROW, vPC = TMP, TMP + 1
    e(f"v_lshrrev_b32 v{vROW}, 3, v{vLANE}", f"s_lshl_b32 s{sTMP}, s{sTB}, 4", f"v_add_u32 v{vROW}, s{sTMP}, v{vROW}",
      f"v_bfe_u32 v{vPC}, v{vLANE}, 4, 1", f"v_lshlrev_b32 v{vPC}, 2, v{vPC}", f"v_xor_b32 v{vPC}, v{vPC}, v{vLANE}", f"v_and_b32 v{vPC}, 7, v{vPC}", f"v_lshlrev_b32 v{vPC}, 4, v{vPC}")
    def pair_addr(ptr, coloff_s, stride):
        e(f"s_add_u32 s{sB}, s{ptr}, s{coloff_s}", f"s_addc_u32 s{sB+1}, s{ptr+1}, 0", f"s_mov_b32 s{sB+2}, {stride}",
          f"v_mul_lo_u32 v{vAX}, v{vROW}, s{sB+2}", f"v_add_u32 v{vAX}, v{vAX}, v{vPC}",
          f"v_mov_b32 v{vG[0]+1}, s{sB+1}", f"v_add_co_u32 v{vG[0]}, vcc, s{sB}, v{vAX}", f"v_addc_co_u32 v{vG[0]+1}, vcc, 0, v{vG[0]+1}, vcc",
          f"v_add_co_u32 v{vG[1]}, vcc, {8*stride}, v{vG[0]}", f"v_addc_co_u32 v{vG[1]+1}, vcc, 0, v{vG[0]+1}, vcc",
          f"s_mov_b32 s{sSTEP}, {64*stride}", f"s_mov_b32 s{sSTEP+1}, {64*stride}")
    e(f"s_cmp_eq_u32 s{sROLE}, 0", f"s_cbranch_scc0 L_{name}_addrY")
    e(f"s_cmp_lt_u32 s{sJ}, 14", f"s_cselect_b32 s{sTMP}, s{sJ}, 0", f"s_lshl_b32 s{sTMP}, s{sTMP}, 7")
    pair_addr(sWIN, sTMP, 3584)
    e(f"v_lshrrev_b32 v{vT0}, 2, v{vLANE}", f"s_lshl_b32 s{sTMP}, s{sTB}, 4", f"v_add_u32 v{vT0}, s{sTMP}, v{vT0}", f"v_and_b32 v{vT1}, 3, v{vLANE}", f"v_lshlrev_b32 v{vT1}, 4, v{vT1}",
      f"s_lshl_b32 s{sTMP}, s{sJ}, 6", f"s_add_u32 s{sB}, s{sWQ}, s{sTMP}", f"s_addc_u32 s{sB+1}, s{sWQ+1}, 0",
      f"v_lshlrev_b32 v{vAX}, 10, v{vT0}", f"v_add_u32 v{vAX}, v{vAX}, v{vT1}",
      f"v_mov_b32 v{vG[2]+1}, s{sB+1}", f"v_add_co_u32 v{vG[2]}, vcc, s{sB}, v{vAX}", f"v_addc_co_u32 v{vG[2]+1}, vcc, 0, v{vG[2]+1}, vcc", f"s_mov_b32 s{sSTEP+2}, {64*1024}")
    e(f"s_cmp_eq_u32 s{sJ}, 14", f"s_cbranch_scc0 L_{name}_addrDone")
    e(f"v_lshlrev_b32 v{vAX}, 5, v{vROW}", f"v_and_b32 v{vT0}, 16, v{vPC}", f"v_add_u32 v{vAX}, v{vAX}, v{vT0}",
      f"v_and_b32 v{vT0}, 0x60, v{vPC}", f"v_cmp_eq_u32 vcc, 32, v{vT0}",
      f"v_mov_b32 v{vAW[0]}, s{sWK}", f"v_mov_b32 v{vG[0]+1}, s{sWK+1}", f"v_mov_b32 v{vG[0]}, s{sWV}", f"v_mov_b32 v{vT1}, s{sWV+1}",
      f"v_cndmask_b32 v{vAW[0]}, v{vAW[0]}, v{vG[0]}, vcc", f"v_cndmask_b32 v{vG[0]+1}, v{vG[0]+1}, v{vT1}, vcc",
      f"v_add_co_u32 v{vG[0]}, vcc, v{vAW[0]}, v{vAX}", f"v_addc_co_u32 v{vG[0]+1}, vcc, 0, v{vG[0]+1}, vcc",
      f"v_add_co_u32 v{vG[1]}, vcc, {8*32}, v{vG[0]}", f"v_addc_co_u32 v{vG[1]+1}, vcc, 0, v{vG[0]+1}, vcc",
      f"s_mov_b32 s{sSTEP}, {64*32}", f"s_mov_b32 s{sSTEP+1}, {64*32}")
    e(f"s_branch L_{name}_addrDone")
    A.label(f"L_{name}_addrY")
    e(f"s_cmp_lt_u32 s{sJ}, 14", f"s_cselect_b32 s{sTMP}, s{sJ}, 0", f"s_lshl_b32 s{sTMP}, s{sTMP}, 7", f"s_add_u32 s{sTMP}, s{sTMP}, 1792")
    pair_addr(sWIN, sTMP, 3584)
    e(f"v_mov_b32 v{vG[2]}, v{vG[1]}", f"v_mov_b32 v{vG[2]+1}, v{vG[1]+1}", f"s_mov_b32 s{sSTEP+2}, 0")
    A.label(f"L_{name}_addrDone")

    WOFF = {0: 16384, 1: 16384 + 12288}
    QOFF = 16384 + 8192
    def dma_pieces(nb, blk0, slot_s):
        P = []
        for q in range(2):
            o = []
            if q == 0: o += [f"s_lshl_b32 s{sDST}, s{sW}, 11", f"s_add_u32 s{sDST}, s{sDST}, s{slot_s}"]
            o += [f"s_add_u32 m0, s{sDST}, {q*1024}", "s_nop 0", f"buffer_load_dwordx4 v{vXO[q]}, s[{SRD_X}:{SRD_X+3}], s{sXOFF} offen lds" if not cfg.get('noX') else "s_nop 0"]
            if q == 1: o += [f"s_add_u32 s{sXOFF}, s{sXOFF}, 128"]
            P.append(o)
        role_ = 0 if nb == 3 else 1
        for b in range(nb):
            o = []
            if b == 0: o += [f"s_lshl_b32 s{sDST}, s{sTB}, 11", f"s_add_u32 s{sDST}, s{sDST}, s{slot_s}"]
            if b == 2: o += [f"s_lshl_b32 s{sDST}, s{sTB}, 10", f"s_add_u32 s{sDST}, s{sDST}, s{slot_s}"]
            dst = WOFF[role_] + b*1024 if b < 2 else QOFF
            o += [f"s_add_u32 m0, s{sDST}, {dst}", "s_nop 0", f"global_load_lds_dwordx4 {vr(vG[b],2)}, off" if not cfg.get('noW') else "s_nop 0",
                  f"v_add_co_u32 v{vG[b]}, vcc, s{sSTEP+b}, v{vG[b]}", f"v_addc_co_u32 v{vG[b]+1}, vcc, 0, v{vG[b]+1}, vcc"]
            P.append(o)
        return P
    def dma_chunk(nb, blk0, slot_s):
        return [x for p in dma_pieces(nb, blk0, slot_s) for x in p]
    def read_groups(nb, blk0, sp, buf, slot_s):
        role_ = 0 if nb == 3 else 1
        G = [[f"v_add_u32 v{vAX}, s{slot_s}, v{vXB[sp]}", f"v_add_u32 v{vAW[buf]}, s{slot_s}, v{vWB[sp]}", f"ds_read_b128 {vr(XF[buf],4)}, v{vAX}"]]
        for b in range(nb):
            if b == 0: ad, off, d2 = vAW[buf], WOFF[role_], 512
            elif b == 1: ad, off, d2 = vAW1, WOFF[role_], 512
            else: ad, off, d2 = vAWQ, QOFF, 256
            g = []
            if b == 1: g.append(f"v_xor_b32 v{vAW1}, 64, v{vAW[buf]}")
            if b == 2: g.append(f"v_add_u32 v{vAWQ}, s{slot_s}, v{vQB[sp]}")
            g += [f"ds_read_b64_tr_b16 {vr(WF[buf][b],2)}, v{ad} offset:{off}", f"ds_read_b64_tr_b16 {vr(WF[buf][b]+2,2)}, v{ad} offset:{off+d2}"]
            if b == 0: G[0] += g
            else: G.append(g)
        if cfg.get('noR'): G = [G[0][:2]] + [[] for _ in range(nb-1)]
        if cfg.get('noAddr'):
            G[0] = G[0][2:]
            G = [[x.replace(f", v{vAX}", f", v{vXB[sp]}").replace(f", v{vAW[buf]} ", f", v{vWB[sp]} ") for x in g] for g in G]
        return G

    def main(role):
        nb = 3 if role == 0 else 2
        blk0 = 0 if role == 0 else 3
        n = 2 + nb
        L = f"L_{name}_r{role}"
        e(f"s_mov_b32 s{sXOFF}, 0")
        if cfg.get('prio', (0, 0))[role]: e(f"s_setprio {cfg.get('prio', (0, 0))[role]}")
        for c in range(3):
            e(f"s_mov_b32 s{sTMP}, {c*SLOT}")
            e(dma_chunk(nb, blk0, sTMP))
        D.stamp(1)
        for b in range(nb):
            for i in range(16): e(f"v_mov_b32 v{ACC[b]+i}, 0")
            for i in range(16): e(f"v_mov_b32 v{mCS[b]+i}, 0")
        for i in range(2): e(f"v_mov_b32 v{vQ1[i]}, 0", f"v_mov_b32 v{vQ2[i]}, 0")
        for i in range(4): e(f"v_mov_b32 v{vONE+i}, 0x3f803f80")
        e(f"s_waitcnt vmcnt({2*n})", "s_barrier")
        D.stamp(2)
        e(f"s_mov_b32 s{sC}, 0", f"s_mov_b32 s{sCUR}, 0", f"s_mov_b32 s{sNXT}, {SLOT}")
        e([x for g in read_groups(nb, blk0, 0, 0, sCUR) for x in g])
        e([x for g in read_groups(nb, blk0, 1, 1, sCUR) for x in g])
        m44 = lambda d, a_, b_: f"v_mfma_f32_4x4x4_16b_bf16 {vr(d,4)}, {vr(a_,2)}, {vr(b_,2)}, {vr(d,4)}"
        def body(with_dma, Ln):
            for sp in range(4):
                buf = sp
                pieces = []
                if sp == 2:
                    if with_dma:
                        e(f"s_waitcnt vmcnt({n})", "s_barrier" if not cfg.get('noB') else "s_nop 0",
                          f"s_add_u32 s{sTMP}, s{sC}, 3", f"s_and_b32 s{sTMP}, s{sTMP}, 3", f"s_mul_i32 s{sTMP}, s{sTMP}, {SLOT}")
                    else:
                        e(f"s_cmp_eq_u32 s{sC}, 7", f"s_cbranch_scc1 {Ln}_nob", f"s_cmp_eq_u32 s{sC}, 6", f"s_cbranch_scc1 {Ln}_w0",
                          f"s_waitcnt vmcnt({n})", f"s_branch {Ln}_bar", f"{Ln}_w0:", "s_waitcnt vmcnt(0)", f"{Ln}_bar:", "s_barrier" if not cfg.get('noB') else "s_nop 0", f"{Ln}_nob:")
                if with_dma and sp >= 2 and not cfg.get('noP'):
                    allp = dma_pieces(nb, blk0, sTMP)
                    h = (len(allp) + 1) // 2
                    pieces = allp[:h] if sp == 2 else allp[h:]
                G = read_groups(nb, blk0, (sp+2) % 4, (sp+2) % 4, sCUR if sp < 2 else sNXT)
                nr = [len([x for x in g if x.startswith('ds_')]) for g in G]
                sq = []
                if not cfg.get('noD'):
                    for i in range(2):
                        xr = XF[buf] + 2*role + i
                        sq.append([f"v_lshlrev_b32 v{vU[2*i]}, 16, v{xr}", f"v_and_b32 v{vU[2*i+1]}, 0xffff0000, v{xr}"])
                    for i in range(2):
                        sq.append([f"v_add_f32 v{vQ1[0]}, v{vQ1[0]}, v{vU[2*i]}", f"v_add_f32 v{vQ1[1]}, v{vQ1[1]}, v{vU[2*i+1]}"])
                        sq.append([f"v_fma_f32 v{vQ2[0]}, v{vU[2*i]}, v{vU[2*i]}, v{vQ2[0]}", f"v_fma_f32 v{vQ2[1]}, v{vU[2*i+1]}, v{vU[2*i+1]}, v{vQ2[1]}"])
                for b in range(nb):
                    pend = sum(nr[b+1:]) + sum(nr) + sum(nr[:b])
                    e(f"s_waitcnt lgkmcnt({pend})")
                    if not cfg.get('noM'): e(mfma32(vr(ACC[b],16), vr(WF[buf][b],4), vr(XF[buf],4), vr(ACC[b],16)))
                    e(G[b])
                    if pieces: e(pieces.pop(0))
                    for _ in range(2 if nb == 3 else 3):
                        if sq: e(sq.pop(0))
                if not cfg.get('noD'):
                    while sq: e(sq.pop(0))
                    if sp == 0 and not cfg.get('noCS'):
                        for b in range(nb): e(mfma32(vr(mCS[b],16), vr(vONE,4), vr(WF[buf][b],4), vr(mCS[b],16)))
                while pieces: e(pieces.pop(0))
            if cfg.get('chunkstamp'):
                for k in range(14, 7, -1): e(f"s_mov_b32 s{65+2*k}, s{65+2*(k-1)}", f"s_mov_b32 s{64+2*k}, 1")
                e("s_memtime s[98:99]", "s_waitcnt lgkmcnt(0)", f"s_mov_b32 s{65+2*7}, s98", f"s_mov_b32 s{64+2*7}, 1")
            e(f"s_add_u32 s{sC}, s{sC}, 1", f"s_mov_b32 s{sCUR}, s{sNXT}", f"s_add_u32 s{sTMP}, s{sC}, 1", f"s_and_b32 s{sTMP}, s{sTMP}, 3", f"s_mul_i32 s{sNXT}, s{sTMP}, {SLOT}")
        A.label(L)
        body(True, L)
        e(f"s_cmp_lt_u32 s{sC}, 5", f"s_cbranch_scc1 {L}")
        A.label(f"{L}_b")
        body(False, f"{L}_b")
        e(f"s_cmp_lt_u32 s{sC}, 8", f"s_cbranch_scc1 {L}_b")
        e("s_waitcnt lgkmcnt(0)")
        D.stamp(3)
        e(f"v_add_f32 v{vS1}, v{vQ1[0]}, v{vQ1[1]}", f"v_add_f32 v{vS2}, v{vQ2[0]}, v{vQ2[1]}", f"v_mov_b32 v{vT0}, v{vS1}", f"v_mov_b32 v{vT1}, v{vS2}", "s_nop 0",
          f"v_permlane32_swap_b32 v{vT0}, v{vS1}", f"v_permlane32_swap_b32 v{vT1}, v{vS2}", "s_nop 0", f"v_add_f32 v{vMU}, v{vS1}, v{vT0}", f"v_add_f32 v{vMU+1}, v{vS2}, v{vT1}",
          f"v_and_b32 v{vT0}, 31, v{vLANE}", f"s_lshl_b32 s{sTMP}, s{sTB}, 5", f"v_add_u32 v{vT1}, s{sTMP}, v{vT0}", f"v_lshlrev_b32 v{vT1}, 3, v{vT1}", f"v_add_u32 v{vT1}, {LDS_STATS}, v{vT1}",
          f"ds_write_b64 v{vT1}, {vr(vMU,2)} offset:{role*1024}",
          f"v_lshlrev_b32 v{vT0}, 2, v{vT0}", f"s_mul_i32 s{sTMP}, s{sTB}, 640", f"s_add_u32 s{sTMP}, s{sTMP}, {LDS_CS + blk0*128}", f"v_add_u32 v{vT0}, s{sTMP}, v{vT0}")
        for b in range(nb): e(f"ds_write_b32 v{vT0}, v{mCS[b]} offset:{b*128}")
        e("s_waitcnt lgkmcnt(0)", "s_barrier")
        CSR = [16, 32, 224]
        CT = [160, 176, 192]
        e(f"ds_read_b64 {vr(vMU,2)}, v{vT1}", f"ds_read_b64 {vr(vS1+1,2)}, v{vT1} offset:1024",
          f"v_lshrrev_b32 v{vT0}, 5, v{vLANE}", f"v_lshlrev_b32 v{vT0}, 4, v{vT0}", f"v_add_u32 v{vT0}, {LDS_CS + blk0*128}, v{vT0}")
        e("s_waitcnt lgkmcnt(0)")
        e(f"v_add_f32 v{vMU}, v{vMU}, v{vS1+1}", f"v_add_f32 v{vMU+1}, v{vMU+1}, v{vS1+2}")
        for b in range(nb):
            for g in range(4): e(f"ds_read_b128 {vr(CSR[b]+4*g,4)}, v{vT0} offset:{b*128 + g*32}")
            for g in range(4): e(f"ds_read_b128 {vr(CT[b]+4*g,4)}, v{vT0} offset:{640 + b*128 + g*32}")
            if b == 0:
                e(f"v_mul_f32 v{vMU}, {fbits(1/512)}, v{vMU}", f"v_mul_f32 v{vMU+1}, {fbits(1/512)}, v{vMU+1}",
                  f"v_fma_f32 v{vMU+1}, -v{vMU}, v{vMU}, v{vMU+1}", f"v_max_f32 v{vMU+1}, 0, v{vMU+1}", f"v_add_f32 v{vMU+1}, {fbits(1e-5)}, v{vMU+1}",
                  f"v_rsq_f32 v{vR}, v{vMU+1}", f"v_sub_f32 v{vMU}, 0, v{vMU}")
            e("s_waitcnt lgkmcnt(0)")
            for p in range(8): e(f"v_pk_add_f32 {vr(CSR[b]+2*p,2)}, {vr(CSR[b]+2*p,2)}, {vr(CT[b]+2*p,2)}")
            for g in range(4): e(f"ds_read_b128 {vr(CT[b]+4*g,4)}, v{vT0} offset:{2*640 + b*128 + g*32}")
            for g in range(4): e(f"ds_read_b128 {vr(TMP+4*g,4)}, v{vT0} offset:{3*640 + b*128 + g*32}")
            e("s_waitcnt lgkmcnt(0)")
            for p in range(8): e(f"v_pk_add_f32 {vr(CT[b]+2*p,2)}, {vr(CT[b]+2*p,2)}, {vr(TMP+2*p,2)}", f"v_pk_add_f32 {vr(CSR[b]+2*p,2)}, {vr(CSR[b]+2*p,2)}, {vr(CT[b]+2*p,2)}")
        for b in range(nb):
            for p in range(8): e(f"v_pk_fma_f32 {vr(ACC[b]+2*p,2)}, {vr(CSR[b]+2*p,2)}, {vr(vMU,2)}, {vr(ACC[b]+2*p,2)} op_sel_hi:[1,0,1]")
        D.stamp(4)
        laneoff = lambda: [f"v_lshlrev_b32 v{vST}, 4, v{vLANE}"]
        def pack8(acc):
            for p in range(8): e(f"v_cvt_pk_bf16_f32 v{vP+p}, v{acc+2*p}, v{acc+2*p+1}")
        def z1_epi(b, fb_expr_s):
            gelu_block(A, ACC[b], TMP, vR, sC3, vC1)
            pack8(ACC[b])
            e(f"s_mul_i32 s{sTMP}, s{sTBG}, 28", f"s_add_u32 s{sTMP}, s{sTMP}, s{fb_expr_s}", f"s_lshl_b32 s{sTMP}, s{sTMP}, 11", f"s_add_u32 s{sTMP}, s{sTMP}, {WS_Z1}")
            e(laneoff())
            e(f"buffer_store_dwordx4 {vr(vP,4)}, v{vST}, s[{SRD_WS}:{SRD_WS+3}], s{sTMP} offen{SC}", f"buffer_store_dwordx4 {vr(vP+4,4)}, v{vST}, s[{SRD_WS}:{SRD_WS+3}], s{sTMP} offen offset:1024{SC}")
        if role == 0:
            b = 2
            e(f"v_mul_f32 v{vR+1}, {fbits(QSCALE)}, v{vR}")
            for p in range(8): e(f"v_pk_mul_f32 {vr(ACC[b]+2*p,2)}, {vr(ACC[b]+2*p,2)}, {vr(vR,2)} op_sel:[0,1] op_sel_hi:[1,1]")
            pack8(ACC[b])
            e(f"s_lshl_b32 s{sTMP}, s{sTBG}, 5", f"s_lshl_b32 s{sTMP+1}, s{sJ}, 1", f"s_add_u32 s{sTMP}, s{sTMP}, s{sTMP+1}", f"s_lshl_b32 s{sTMP}, s{sTMP}, 10", f"s_add_u32 s{sTMP}, s{sTMP}, {WS_QF}")
            e(laneoff())
            e(f"buffer_store_dwordx4 {vr(vP,4)}, v{vST}, s[{SRD_WS}:{SRD_WS+3}], s{sTMP} offen{SC}", f"buffer_store_dwordx4 {vr(vP+4,4)}, v{vST}, s[{SRD_WS}:{SRD_WS+3}], s{sTMP} offen offset:1024{SC}")
            e(f"s_cmp_lt_u32 s{sJ}, 14", f"s_cbranch_scc0 L_{name}_notz1")
            e(f"s_lshl_b32 s{sTMP+3}, s{sJ}, 1")
            z1_epi(0, sTMP+3)
            e(f"s_add_u32 s{sTMP+3}, s{sTMP+3}, 1")
            z1_epi(1, sTMP+3)
            e(f"s_branch L_{name}_done")
            A.label(f"L_{name}_notz1")
            e(f"s_cmp_eq_u32 s{sJ}, 14", f"s_cbranch_scc0 L_{name}_done")
            b = 0; acc = ACC[0]
            for p in range(8): e(f"v_pk_mul_f32 {vr(acc+2*p,2)}, {vr(acc+2*p,2)}, {vr(vR,2)} op_sel_hi:[1,0]")
            e(f"v_mul_f32 v{vT0}, v{acc}, v{acc}")
            for i in range(1, 8): e(f"v_fma_f32 v{vT0}, v{acc+i}, v{acc+i}, v{vT0}")
            e(f"v_mov_b32 v{vT1}, v{vT0}", "s_nop 1", f"v_permlane32_swap_b32 v{vT1}, v{vT0}", "s_nop 1", f"v_add_f32 v{vT0}, v{vT0}, v{vT1}")
            e(f"v_max3_f32 v{vT1}, abs(v{acc+8}), abs(v{acc+9}), abs(v{acc+10})", f"v_max3_f32 v{vT1}, abs(v{acc+11}), abs(v{acc+12}), v{vT1}",
              f"v_max3_f32 v{vT1}, abs(v{acc+13}), abs(v{acc+14}), v{vT1}", f"v_max_f32 v{vT1}, abs(v{acc+15}), v{vT1}")
            for reg in (vT0, vT1):
                for sh in (8, 4, 2, 1):
                    e("s_nop 1", f"v_max_f32_dpp v{reg}, v{reg}, v{reg} row_ror:{sh} row_mask:0xf bank_mask:0xf")
                e(f"v_mov_b32 v{vAX}, v{reg}", "s_nop 1", f"v_permlane16_swap_b32 v{vAX}, v{reg}", "s_nop 1", f"v_max_f32 v{reg}, v{reg}, v{vAX}",
                  f"v_mov_b32 v{vAX}, v{reg}", "s_nop 1", f"v_permlane32_swap_b32 v{vAX}, v{reg}", "s_nop 1", f"v_max_f32 v{reg}, v{reg}, v{vAX}")
            e(f"s_lshl_b32 s{sTMP}, s{sTBG}, 2", f"s_add_u32 s{sTMP}, s{sTMP}, {WS_NRM}", f"v_mov_b32 v{vST}, 0",
              f"buffer_store_dword v{vT0}, v{vST}, s[{SRD_WS}:{SRD_WS+3}], s{sTMP} offen{SC}", f"buffer_store_dword v{vT1}, v{vST}, s[{SRD_WS}:{SRD_WS+3}], s{sTMP} offen offset:256{SC}")
            pack8(acc)
            e(f"s_lshl_b32 s{sTMP}, s{sTBG}, 10", f"s_add_u32 s{sTMP+1}, s{sTMP}, {WS_KF}")
            e(laneoff())
            e(f"buffer_store_dwordx4 {vr(vP,4)}, v{vST}, s[{SRD_WS}:{SRD_WS+3}], s{sTMP+1} offen{SC}")
            e(f"v_and_b32 v{vT0}, 31, v{vLANE}", f"v_mul_u32_u24 v{vT0}, 40, v{vT0}", f"v_lshrrev_b32 v{vT1}, 5, v{vLANE}", f"v_lshlrev_b32 v{vT1}, 3, v{vT1}",
              f"v_add_u32 v{vT0}, v{vT0}, v{vT1}", f"s_mul_i32 s{sTMP+2}, s{sW}, 2560", f"v_add_u32 v{vT0}, s{sTMP+2}, v{vT0}",
              f"ds_write_b64 v{vT0}, {vr(vP+4,2)}", f"ds_write_b64 v{vT0}, {vr(vP+6,2)} offset:16")
            e(f"v_bfe_u32 v{vT0}, v{vLANE}, 4, 1", f"v_lshlrev_b32 v{vT0}, 4, v{vT0}", f"v_lshrrev_b32 v{vT1}, 5, v{vLANE}", f"v_lshlrev_b32 v{vT1}, 2, v{vT1}", f"v_add_u32 v{vT0}, v{vT0}, v{vT1}",
              f"v_bfe_u32 v{vT1}, v{vLANE}, 2, 2", f"v_add_u32 v{vT0}, v{vT0}, v{vT1}", f"v_mul_u32_u24 v{vT0}, 40, v{vT0}", f"v_and_b32 v{vT1}, 3, v{vLANE}", f"v_lshlrev_b32 v{vT1}, 3, v{vT1}",
              f"v_add_u32 v{vT0}, v{vT0}, v{vT1}", f"v_add_u32 v{vT0}, s{sTMP+2}, v{vT0}",
              "s_waitcnt lgkmcnt(0)",
              f"ds_read_b64_tr_b16 {vr(vTR,2)}, v{vT0}", f"ds_read_b64_tr_b16 {vr(vTR+2,2)}, v{vT0} offset:320")
            e(f"v_bfe_u32 v{vST}, v{vLANE}, 4, 1", f"v_lshlrev_b32 v{vST}, 9, v{vST}", f"v_lshrrev_b32 v{vT1}, 5, v{vLANE}", f"v_lshlrev_b32 v{vT1}, 8, v{vT1}", f"v_add_u32 v{vST}, v{vST}, v{vT1}",
              f"v_and_b32 v{vT1}, 15, v{vLANE}", f"v_lshlrev_b32 v{vT1}, 4, v{vT1}", f"v_add_u32 v{vST}, v{vST}, v{vT1}",
              f"s_add_u32 s{sTMP+1}, s{sTMP}, {WS_VF}", "s_waitcnt lgkmcnt(0)",
              f"buffer_store_dwordx4 {vr(vTR,4)}, v{vST}, s[{SRD_WS}:{SRD_WS+3}], s{sTMP+1} offen{SC}")
            e(f"s_branch L_{name}_done")
        else:
            e(f"s_cmp_lt_u32 s{sJ}, 14", f"s_cbranch_scc0 L_{name}_noz2")
            vZS = 208
            for i in range(4): e(f"v_mov_b32 v{vZS+i}, 0")
            vWR, vRD = vXB[0], vXB[1]
            e(f"v_and_b32 v{vWR}, 31, v{vLANE}", f"v_mul_u32_u24 v{vWR}, 72, v{vWR}", f"v_lshrrev_b32 v{vT1}, 5, v{vLANE}", f"v_lshlrev_b32 v{vT1}, 3, v{vT1}",
              f"v_add_u32 v{vWR}, v{vWR}, v{vT1}", f"s_mul_i32 s{sTMP+2}, s{sW}, 2560", f"v_add_u32 v{vWR}, s{sTMP+2}, v{vWR}")
            e(f"v_lshrrev_b32 v{vRD}, 5, v{vLANE}", f"v_lshlrev_b32 v{vRD}, 3, v{vRD}", f"v_bfe_u32 v{vT1}, v{vLANE}, 2, 2", f"v_add_u32 v{vRD}, v{vRD}, v{vT1}", f"v_mul_u32_u24 v{vRD}, 72, v{vRD}",
              f"v_bfe_u32 v{vT1}, v{vLANE}, 4, 1", f"v_lshlrev_b32 v{vT1}, 5, v{vT1}", f"v_add_u32 v{vRD}, v{vRD}, v{vT1}", f"v_and_b32 v{vT1}, 3, v{vLANE}", f"v_lshlrev_b32 v{vT1}, 3, v{vT1}",
              f"v_add_u32 v{vRD}, v{vRD}, v{vT1}", f"v_add_u32 v{vRD}, s{sTMP+2}, v{vRD}")
            for b in range(2):
                acc = ACC[b]
                gelu_block(A, acc, TMP, vR, sC3, vC1)
                for p in range(8): e(f"v_pk_add_f32 {vr(vZS,2)}, {vr(vZS,2)}, {vr(acc+2*p,2)}", f"v_pk_fma_f32 {vr(vZS+2,2)}, {vr(acc+2*p,2)}, {vr(acc+2*p,2)}, {vr(vZS+2,2)}")
                pack8(acc)
                for g in range(4): e(f"ds_write_b64 v{vWR}, {vr(vP+2*g,2)} offset:{16*g}")
                e("s_waitcnt lgkmcnt(0)")
                for m in range(2):
                    e(f"ds_read_b64_tr_b16 {vr(vTR+4*m,2)}, v{vRD} offset:{m*16*72}", f"ds_read_b64_tr_b16 {vr(vTR+4*m+2,2)}, v{vRD} offset:{m*16*72+4*72}")
                e(f"s_lshl_b32 s{sTMP}, s{sTBG}, 1", f"s_mul_i32 s{sTMP}, s{sTMP}, 28", f"s_lshl_b32 s{sTMP+1}, s{sJ}, 1", f"s_add_u32 s{sTMP}, s{sTMP}, s{sTMP+1}", f"s_add_u32 s{sTMP}, s{sTMP}, {b}",
                  f"s_lshl_b32 s{sTMP}, s{sTMP}, 10", f"s_add_u32 s{sTMP}, s{sTMP}, {WS_Z2R}", f"s_add_u32 s{sTMP+1}, s{sTMP}, {28*1024}")
                e(laneoff())
                e("s_waitcnt lgkmcnt(0)")
                e(f"buffer_store_dwordx4 {vr(vTR,4)}, v{vST}, s[{SRD_WS}:{SRD_WS+3}], s{sTMP} offen{SC}", f"buffer_store_dwordx4 {vr(vTR+4,4)}, v{vST}, s[{SRD_WS}:{SRD_WS+3}], s{sTMP+1} offen{SC}")
                e("s_nop 1")
            e(f"v_add_f32 v{vS1}, v{vZS}, v{vZS+1}", f"v_add_f32 v{vS2}, v{vZS+2}, v{vZS+3}")
            e(f"s_branch L_{name}_st")
            A.label(f"L_{name}_noz2")
            e(f"v_mov_b32 v{vS1}, 0", f"v_mov_b32 v{vS2}, 0")
            e(f"s_cmp_eq_u32 s{sJ}, 15", f"s_cbranch_scc0 L_{name}_st", f"s_cmp_lt_u32 s{sI}, 9", f"s_cbranch_scc0 L_{name}_st")
            for i in range(4): e(f"v_mov_b32 v{vP+i}, 0")
            e(f"s_lshl_b32 s{sTMP}, s{sI}, 2", f"s_add_u32 s{sTMP}, s{sTMP}, s{sTB}", f"s_lshl_b32 s{sTMP}, s{sTMP}, 10", f"s_add_u32 s{sTMP}, s{sTMP}, {WS_FLG}")
            e(laneoff())
            e(f"buffer_store_dwordx4 {vr(vP,4)}, v{vST}, s[{SRD_WS}:{SRD_WS+3}], s{sTMP} offen{SC}")
            A.label(f"L_{name}_st")
            for S in (vS1, vS2):
                e(f"v_mov_b32 v{vT1}, v{S}", "s_nop 1", f"v_permlane32_swap_b32 v{vT1}, v{S}", "s_nop 1", f"v_add_f32 v{S}, v{S}, v{vT1}")
            e(f"v_mov_b32 v{vP}, v{vS1}", f"v_mov_b32 v{vP+1}, v{vS2}",
              f"s_lshl_b32 s{sTMP}, s{sTBG}, 4", f"s_add_u32 s{sTMP}, s{sTMP}, s{sJ}", f"s_lshl_b32 s{sTMP}, s{sTMP}, 8", f"s_add_u32 s{sTMP}, s{sTMP}, {WS_ST}",
              f"v_and_b32 v{vST}, 31, v{vLANE}", f"v_lshlrev_b32 v{vST}, 3, v{vST}",
              f"buffer_store_dwordx2 {vr(vP,2)}, v{vST}, s[{SRD_WS}:{SRD_WS+3}], s{sTMP} offen{SC}")
            e(f"s_branch L_{name}_done")

    e(f"s_cmp_eq_u32 s{sROLE}, 0", f"s_cbranch_scc0 L_{name}_Y")
    main(0)
    A.label(f"L_{name}_Y")
    main(1)
    A.label(f"L_{name}_done")
    D.stamp(5)
    e("s_waitcnt vmcnt(0)")
    D.stamp(6)
    if ctx: return
    D.flush(sWS, sW)
    A.label(f"L_{name}_end")
    e("s_endpgm")
    txt = kernel_head(name) + A.text() + KD.format(name=name, vgpr=NV, sgpr=100, acc=NV)
    return txt
```

```python
from asmlib import *
import struct
def fbits(x): return "0x%08x" % struct.unpack("<I", struct.pack("<f", x))[0]

LDS_V = 65536
LDS_BOUNCE = 131072
XA_BASE = 0
XB_BASE = 32768
SPIN_MAX = 1 << 20

def wave_max(e, reg, tmp):
    for sh in (8, 4, 2, 1):
        e("s_nop 1", f"v_max_f32_dpp v{reg}, v{reg}, v{reg} row_ror:{sh} row_mask:0xf bank_mask:0xf")
    e(f"v_mov_b32 v{tmp}, v{reg}", "s_nop 1", f"v_permlane16_swap_b32 v{tmp}, v{reg}", "s_nop 1", f"v_max_f32 v{reg}, v{reg}, v{tmp}",
      f"v_mov_b32 v{tmp}, v{reg}", "s_nop 1", f"v_permlane32_swap_b32 v{tmp}, v{reg}", "s_nop 1", f"v_max_f32 v{reg}, v{reg}, v{tmp}")

def gen_p2(name, cfg=None, ctx=None):
    cfg = cfg or {}
    A = ctx['A'] if ctx else Asm(); e = A.e
    D = ctx['D'] if ctx else Diag(A, cfg.get('diag'), 1)
    SC = " sc0 sc1" if ctx else ""
    sWS, sWSP, sBSP = 4, 6, 8
    SRD_WS, SRD_WSP, SRD_BSP = 12, 16, 20
    sI, sJ, sW, sA = 24, 25, 26, 27
    sT = 28
    sCNT, sTBG, sQO = 36, 37, 38
    sLB = 39; sEX = 40; sZ, sWO, sT2 = 42, 43, 44
    sKAP = 45
    WSR = f"s[{SRD_WS}:{SRD_WS+3}]"
    vLANE = 1; vT0, vT1, vT2, vT3 = 2, 3, 4, 5
    NV = 256
    if not ctx: e("s_cmp_ge_u32 s2, 256", f"s_cbranch_scc1 L_{name}_end")
    e("s_load_dwordx2 s[4:5], s[0:1], 96", "s_load_dwordx4 s[8:11], s[0:1], 56")
    if not ctx: D.init()
    D.stamp(0)
    e(f"v_and_b32 v{vLANE}, 63, v0", f"v_lshrrev_b32 v{vT0}, 6, v0", "s_nop 0", f"v_readfirstlane_b32 s{sW}, v{vT0}")
    e(f"s_and_b32 s{sT}, s2, 7", f"s_lshr_b32 s{sT+1}, s2, 3", f"s_and_b32 s{sJ}, s{sT+1}, 7", f"s_lshr_b32 s{sI}, s{sT+1}, 3", f"s_lshl_b32 s{sI}, s{sI}, 3", f"s_add_u32 s{sI}, s{sI}, s{sT}")
    e(f"s_and_b32 s{sA}, s{sW}, 3", f"s_mov_b32 s{sEX}, 0x0000ffff", f"s_mov_b32 s{sEX+1}, 0x0000ffff")
    e("s_waitcnt lgkmcnt(0)")
    e(srd(SRD_WS, 4, WS_END), srd(SRD_WSP, 8, 2048*4096), srd(SRD_BSP, 10, 4096))
    def kv_fill(phase):
        e(f"v_lshlrev_b32 v{vT0}, 4, v{vLANE}", f"s_lshl_b32 s{sT}, s{sA}, 15")
        if phase == 0: cnt = 8
        else:
            e(f"s_add_u32 s{sT}, s{sT}, 8192"); cnt = 24
        e(f"s_add_u32 s{sT+1}, s{sT}, {WS_KF}")
        for n in range(cnt):
            e(f"s_add_u32 m0, s{sT}, {n*1024}", f"s_add_u32 s{sT+2}, s{sT+1}, {n*1024}", f"buffer_load_dwordx4 v{vT0}, {WSR}, s{sT+2} offen lds")
    e(f"s_cmp_ge_u32 s{sW}, 4", f"s_cbranch_scc1 L_{name}_B")

    Q = [8, 12, 16, 20]; O = [24, 40, 56, 72]; S = [88, 104]; K = [120, 124]; V = [128, 136]
    vKA, vVA = 6, 7
    vM = [144, 145, 146, 147]
    vX = 148
    e(f"s_and_b32 s{sT}, s{sA}, 1", f"s_lshr_b32 s{sKAP}, s{sA}, 1", f"s_lshl_b32 s{sTBG}, s{sI}, 1", f"s_add_u32 s{sTBG}, s{sTBG}, s{sT}")
    kv_fill(0)
    e(f"s_lshl_b32 s{sT}, s{sTBG}, 5", f"s_lshl_b32 s{sT+1}, s{sJ}, 2", f"s_add_u32 s{sT}, s{sT}, s{sT+1}", f"s_lshl_b32 s{sQO}, s{sT}, 10", f"s_add_u32 s{sT}, s{sQO}, {WS_QF}")
    e(f"v_lshlrev_b32 v{vT0}, 4, v{vLANE}")
    for q in range(4): e(f"buffer_load_dwordx4 {vr(Q[q],4)}, v{vT0}, {WSR}, s{sT} offen offset:{q*1024}")
    e(f"v_and_b32 v{vT1}, 31, v{vLANE}", f"v_lshlrev_b32 v{vT1}, 2, v{vT1}", f"s_lshl_b32 s{sT}, s{sKAP}, 7", f"s_add_u32 s{sT}, s{sT}, {WS_NRM}",
      f"buffer_load_dword v{vT2}, v{vT1}, {WSR}, s{sT} offen", f"buffer_load_dword v{vT3}, v{vT1}, {WSR}, s{sT} offen offset:256")
    D.stamp(8)
    for q in range(4):
        for i in range(16): e(f"v_mov_b32 v{O[q]+i}, 0")
        e(f"v_mov_b32 v{vM[q]}, 0")
    for i in range(16): e(f"v_mov_b32 v{S[1]+i}, 0")
    e(f"v_and_b32 v{vKA}, 31, v{vLANE}", f"v_cmp_eq_u32 vcc, 16, v{vKA}", f"v_mov_b32 v{vVA}, 0x3f803f80", "s_nop 0")
    for b in range(2):
        for i in range(8): e(f"v_cndmask_b32 v{V[b]+i}, 0, v{vVA}, vcc")
    e(f"s_lshl_b32 s{sT}, s{sKAP}, 15", f"v_lshlrev_b32 v{vKA}, 4, v{vLANE}", f"v_add_u32 v{vKA}, s{sT}, v{vKA}",
      f"v_and_b32 v{vVA}, 15, v{vLANE}", f"v_lshlrev_b32 v{vVA}, 4, v{vVA}", f"v_lshrrev_b32 v{vT0}, 5, v{vLANE}", f"v_lshlrev_b32 v{vT0}, 8, v{vT0}",
      f"v_add_u32 v{vVA}, v{vVA}, v{vT0}", f"s_add_u32 s{sT}, s{sT}, {LDS_V}", f"v_add_u32 v{vVA}, s{sT}, v{vVA}")
    D.stamp(9)
    e("s_waitcnt vmcnt(0)")
    D.stamp(10)
    QN = vX + 1
    QT = vX + 5
    for q in range(4): e(f"v_mov_b32 v{QN+q}, 0")
    for i in range(4):
        for q in range(4): e(f"v_dot2c_f32_bf16 v{QN+q}, v{Q[q]+i}, v{Q[q]+i}")
    for q in range(4): e(f"v_mov_b32 v{QT+q}, v{QN+q}")
    e("s_nop 0")
    for q in range(4): e(f"v_permlane32_swap_b32 v{QT+q}, v{QN+q}")
    e("s_nop 0")
    for q in range(4): e(f"v_add_f32 v{QN+q}, v{QN+q}, v{QT+q}")
    e(f"v_max3_f32 v{vT0}, v{QN}, v{QN+1}, v{QN+2}", f"v_max_f32 v{vT0}, v{vT0}, v{QN+3}")
    R3 = (vT2, vT3, vT0)
    e("s_nop 0")
    for sh in (8, 4, 2, 1):
        for r in R3: e(f"v_max_f32_dpp v{r}, v{r}, v{r} row_ror:{sh} row_mask:0xf bank_mask:0xf")
    for sw in ("v_permlane16_swap_b32", "v_permlane32_swap_b32"):
        for n, r in enumerate(R3): e(f"v_mov_b32 v{QT+n}, v{r}")
        for n, r in enumerate(R3): e(f"{sw} v{QT+n}, v{r}")
        e("s_nop 0")
        for n, r in enumerate(R3): e(f"v_max_f32 v{r}, v{r}, v{QT+n}")
    e(f"v_mul_f32 v{vT0}, v{vT0}, v{vT2}",
      f"v_cmp_ge_f32 vcc, {fbits(9800.0)}, v{vT0}", f"v_cmp_ge_f32 s[{sT}:{sT+1}], {fbits(32768.0).replace('0x47000000','0x47000000')}, v{vT3}" if False else "s_nop 0")
    e(f"v_mov_b32 v{vX}, {fbits(32768.0)}", f"v_cmp_ge_f32 s[{sT}:{sT+1}], v{vX}, v{vT3}", "s_nop 1", f"s_and_b64 vcc, vcc, s[{sT}:{sT+1}]")
    e(f"s_mov_b64 s[{sT+2}:{sT+3}], vcc")
    D.stamp(1)
    e("s_barrier")
    D.stamp(2)
    e(f"s_cmp_eq_u64 s[{sT+2}:{sT+3}], exec", f"s_cbranch_scc0 L_{name}_slow")
    if cfg.get('force_slow'): e(f"s_branch L_{name}_slow")
    def kv_reads(b, kt_off):
        return [f"ds_read_b128 {vr(K[b],4)}, v{vKA} offset:{kt_off*1024}", f"s_mov_b64 exec, s[{sEX}:{sEX+1}]",
                f"ds_read_b128 {vr(V[b],4)}, v{vVA} offset:{kt_off*1024}", f"ds_read_b128 {vr(V[b]+4,4)}, v{vVA} offset:{kt_off*1024+512}", "s_mov_b64 exec, -1"]
    e(kv_reads(0, 0), "s_waitcnt lgkmcnt(0)")
    e(mfma32(vr(S[0],16), vr(K[0],4), vr(Q[0],4), "0"), nops(12))
    U = 16
    e(f"s_mov_b32 s{sCNT}, {128//U}")
    A.label(f"L_{name}_Af")
    for u in range(U):
        q = u % 4; ktl = u // 4; b = ktl % 2; cur = u % 2
        Sc = S[cur]; Sn = S[1-cur]
        qp = (q - 1) % 4; bp = b if q > 0 else 1 - b
        qn = (q + 1) % 4; bn = b if q < 3 else 1 - b
        E = lambda i: f"v_exp_f32 v{Sc+i}, v{Sc+i}"
        C = lambda i: f"v_cvt_pk_bf16_f32 v{Sc+i}, v{Sc+2*i}, v{Sc+2*i+1}"
        e(E(0), E(1))
        e(mfma32(vr(O[qp],16), vr(V[bp]+4,4), vr(Sn+4,4), vr(O[qp],16)))
        e(E(2), E(3))
        if q == 3: e("s_waitcnt lgkmcnt(0)")
        e(E(4))
        e(mfma32(vr(Sn,16), vr(K[bn],4), vr(Q[qn],4), "0"))
        if q == 1: e(kv_reads(1-b, ktl+1))
        e(E(5), E(6), E(7), C(0), C(1), C(2), C(3), E(8), E(9))
        e(mfma32(vr(O[q],16), vr(V[b],4), vr(Sc,4), vr(O[q],16)))
        e([E(i) for i in range(10, 16)], [C(i) for i in range(4, 8)])
    e(f"v_add_u32 v{vKA}, {U//4*1024}, v{vKA}", f"v_add_u32 v{vVA}, {U//4*1024}, v{vVA}")
    e(f"s_sub_u32 s{sCNT}, s{sCNT}, 1", f"s_cmp_eq_u32 s{sCNT}, 7", f"s_cbranch_scc1 L_{name}_Ab1", f"s_cmp_eq_u32 s{sCNT}, 1", f"s_cbranch_scc1 L_{name}_Ab2",
      f"s_cmp_lg_u32 s{sCNT}, 0", f"s_cbranch_scc1 L_{name}_Af")
    e("s_nop 1", mfma32(vr(O[3],16), vr(V[1]+4,4), vr(S[1]+4,4), vr(O[3],16)))
    e(f"s_branch L_{name}_Acomb")
    A.label(f"L_{name}_Ab1")
    e("s_barrier", f"s_branch L_{name}_Af")
    A.label(f"L_{name}_Ab2")
    e("s_barrier", f"s_branch L_{name}_Af")
    A.label(f"L_{name}_slow")
    for q in range(4): e(f"v_mov_b32 v{vM[q]}, {fbits(-1e30)}")
    e("s_barrier")
    e(f"s_mov_b32 s{sCNT}, 32")
    A.label(f"L_{name}_As")
    e(kv_reads(0, 0), "s_waitcnt lgkmcnt(0)")
    for q in range(4):
        Sc = S[0]
        e(mfma32(vr(Sc,16), vr(K[0],4), vr(Q[q],4), "0"), nops(14))
        e(f"v_max3_f32 v{vT0}, v{Sc}, v{Sc+1}, v{Sc+2}")
        for i in range(3, 15, 2): e(f"v_max3_f32 v{vT0}, v{Sc+i}, v{Sc+i+1}, v{vT0}")
        e(f"v_max_f32 v{vT0}, v{Sc+15}, v{vT0}", f"v_mov_b32 v{vT1}, v{vT0}", "s_nop 1", f"v_permlane32_swap_b32 v{vT1}, v{vT0}", "s_nop 1",
          f"v_max3_f32 v{vT0}, v{vT0}, v{vT1}, v{vM[q]}", f"v_sub_f32 v{vT1}, v{vM[q]}, v{vT0}", f"v_exp_f32 v{vT1}, v{vT1}", f"v_mov_b32 v{vM[q]}, v{vT0}")
        for i in range(16): e(f"v_sub_f32 v{Sc+i}, v{Sc+i}, v{vT0}")
        for i in range(16): e(f"v_exp_f32 v{Sc+i}, v{Sc+i}")
        for i in range(9): e(f"v_mul_f32 v{O[q]+i}, v{O[q]+i}, v{vT1}")
        for i in range(8): e(f"v_cvt_pk_bf16_f32 v{Sc+i}, v{Sc+2*i}, v{Sc+2*i+1}")
        e("s_nop 1", mfma32(vr(O[q],16), vr(V[0],4), vr(Sc,4), vr(O[q],16)), mfma32(vr(O[q],16), vr(V[0]+4,4), vr(Sc+4,4), vr(O[q],16)), nops(4))
    e(f"v_add_u32 v{vKA}, 1024, v{vKA}", f"v_add_u32 v{vVA}, 1024, v{vVA}", nops(10))
    e(f"s_sub_u32 s{sCNT}, s{sCNT}, 1", f"s_cmp_eq_u32 s{sCNT}, 4", f"s_cbranch_scc0 L_{name}_As2", "s_barrier")
    A.label(f"L_{name}_As2")
    e(f"s_cmp_lg_u32 s{sCNT}, 0", f"s_cbranch_scc1 L_{name}_As")
    A.label(f"L_{name}_Acomb")
    e(nops(16))
    D.stamp(3)
    for q in range(4):
        e(f"v_mov_b32 v{vT0}, v{O[q]+8}", "s_nop 1", f"v_permlane32_swap_b32 v{O[q]+8}, v{vT0}", "s_nop 1")
        e(f"v_mov_b32 v{O[q]+9}, v{vM[q]}")
    e("s_barrier")
    D.stamp(4)
    e(f"s_lshl_b32 s{sT}, s{sA}, 15", f"s_add_u32 s{sT}, s{sT}, 24576", f"s_xor_b32 s{sT+1}, s{sA}, 2", f"s_lshl_b32 s{sT+1}, s{sT+1}, 15", f"s_add_u32 s{sT+1}, s{sT+1}, 24576",
      f"v_lshlrev_b32 v{vT0}, 4, v{vLANE}", f"v_add_u32 v{vT1}, s{sT+1}, v{vT0}", f"v_add_u32 v{vT0}, s{sT}, v{vT0}",
      f"v_lshlrev_b32 v{vT2}, 3, v{vLANE}", f"v_add_u32 v{vT3}, s{sT+1}, v{vT2}", f"v_add_u32 v{vT2}, s{sT}, v{vT2}")
    e(f"s_cmp_eq_u32 s{sKAP}, 0", f"s_cbranch_scc0 L_{name}_k1")
    for kap in range(2):
        if kap == 1: A.label(f"L_{name}_k1")
        send = [2*(1-kap), 2*(1-kap)+1]; keep = [2*kap, 2*kap+1]
        for n, q in enumerate(send):
            e(f"ds_write_b128 v{vT0}, {vr(O[q],4)} offset:{XA_BASE + n*2560}", f"ds_write_b128 v{vT0}, {vr(O[q]+4,4)} offset:{XA_BASE + n*2560 + 1024}",
              f"ds_write_b64 v{vT2}, {vr(O[q]+8,2)} offset:{XA_BASE + n*2560 + 2048}")
        e("s_waitcnt lgkmcnt(0)", "s_barrier")
        for n, q in enumerate(keep):
            X = vX
            e(f"ds_read_b128 {vr(X,4)}, v{vT1} offset:{XA_BASE + n*2560}", f"ds_read_b128 {vr(X+4,4)}, v{vT1} offset:{XA_BASE + n*2560 + 1024}",
              f"ds_read_b64 {vr(X+8,2)}, v{vT3} offset:{XA_BASE + n*2560 + 2048}", "s_waitcnt lgkmcnt(0)")
            e(f"v_max_f32 v{X+10}, v{O[q]+9}, v{X+9}", f"v_sub_f32 v{X+11}, v{O[q]+9}, v{X+10}", f"v_sub_f32 v{X+12}, v{X+9}, v{X+10}",
              f"v_exp_f32 v{X+11}, v{X+11}", f"v_exp_f32 v{X+12}, v{X+12}", "s_nop 0")
            e(f"v_mul_f32 v{X+13}, v{O[q]+8}, v{X+11}", f"v_fma_f32 v{X+13}, v{X+8}, v{X+12}, v{X+13}", f"v_rcp_f32 v{X+13}, v{X+13}", "s_nop 0",
              f"v_mul_f32 v{X+11}, v{X+11}, v{X+13}", f"v_mul_f32 v{X+12}, v{X+12}, v{X+13}")
            for i in range(8): e(f"v_mul_f32 v{O[q]+i}, v{O[q]+i}, v{X+11}", f"v_fma_f32 v{O[q]+i}, v{X+i}, v{X+12}, v{O[q]+i}")
            for p in range(4): e(f"v_cvt_pk_bf16_f32 v{O[q]+p}, v{O[q]+2*p}, v{O[q]+2*p+1}")
            e(f"s_mul_i32 s{sT+2}, s{sTBG}, 88", f"s_lshl_b32 s{sT+3}, s{sJ}, 2", f"s_add_u32 s{sT+2}, s{sT+2}, s{sT+3}", f"s_add_u32 s{sT+2}, s{sT+2}, {q}",
              f"s_lshl_b32 s{sT+2}, s{sT+2}, 10", f"s_add_u32 s{sT+2}, s{sT+2}, {WS_ACT}", f"v_lshlrev_b32 v{X+14}, 4, v{vLANE}",
              f"buffer_store_dwordx4 {vr(O[q],4)}, v{X+14}, {WSR}, s{sT+2} offen{SC}")
        e(f"s_branch L_{name}_done")

    A.label(f"L_{name}_B")
    ACC = 12; Z = ACC + 128; W = Z + 64
    vZO, vW0, vW1 = 6, 7, 8
    vWR = [9, 10, 11, 236]
    vB = 237
    vZ1 = Z
    e("s_setprio 3")
    e(f"s_cmp_eq_u32 s{sJ}, 7", f"s_cbranch_scc1 L_{name}_Bidle")
    if cfg.get('Bidle'): e(f"s_branch L_{name}_Bidle")
    sKS = sTBG
    e(f"s_lshl_b32 s{sKS}, s{sI}, 2", f"s_add_u32 s{sKS}, s{sKS}, s{sA}")
    PS = W
    RAW = Z
    e(f"s_lshr_b32 s{sT}, s{sKS}, 1", f"s_lshl_b32 s{sT}, s{sT}, 12", f"s_and_b32 s{sT+1}, s{sKS}, 1", f"s_lshl_b32 s{sT+1}, s{sT+1}, 7", f"s_add_u32 s{sT}, s{sT}, s{sT+1}", f"s_add_u32 s{sT}, s{sT}, {WS_ST}",
      f"v_lshrrev_b32 v{vT1}, 4, v{vLANE}", f"v_lshlrev_b32 v{vT1}, 8, v{vT1}", f"v_and_b32 v{vT2}, 15, v{vLANE}", f"v_lshlrev_b32 v{vT2}, 3, v{vT2}", f"v_add_u32 v{vT1}, v{vT1}, v{vT2}")
    for n in range(4): e(f"buffer_load_dwordx2 {vr(PS+2*n,2)}, v{vT1}, {WSR}, s{sT} offen offset:{n*1024}")
    e(f"s_mul_i32 s{sT}, s{sKS}, 28", f"s_lshl_b32 s{sT+1}, s{sJ}, 2", f"s_add_u32 s{sT}, s{sT}, s{sT+1}", f"s_lshl_b32 s{sQO}, s{sT}, 10", f"s_add_u32 s{sT}, s{sQO}, {WS_Z2R}",
      f"v_lshlrev_b32 v{vZO}, 4, v{vLANE}")
    for fb in range(4): e(f"buffer_load_dwordx4 {vr(RAW+4*fb,4)}, v{vZO}, {WSR}, s{sT} offen offset:{fb*1024}")
    e(f"s_lshl_b32 s{sLB}, s{sA}, 13", f"s_add_u32 s{sLB}, s{sLB}, {LDS_BOUNCE}")
    e(f"v_lshrrev_b32 v{vW0}, 3, v{vLANE}", f"v_lshrrev_b32 v{vT0}, 4, v{vLANE}", f"v_xor_b32 v{vT0}, v{vT0}, v{vLANE}", f"v_and_b32 v{vT0}, 7, v{vT0}", f"v_lshlrev_b32 v{vT0}, 4, v{vT0}",
      f"v_lshlrev_b32 v{vW0}, 12, v{vW0}", f"v_add_u32 v{vW0}, v{vW0}, v{vT0}",
      f"s_lshl_b32 s{sT}, s{sI}, 18", f"s_lshl_b32 s{sT+1}, s{sA}, 10", f"s_add_u32 s{sT}, s{sT}, s{sT+1}", f"v_add_u32 v{vW0}, s{sT}, v{vW0}", f"v_xor_b32 v{vW1}, 64, v{vW0}")
    e(f"v_and_b32 v{vT0}, 31, v{vLANE}", f"v_lshrrev_b32 v{vT1}, 1, v{vT0}", f"v_and_b32 v{vT1}, 7, v{vT1}", f"v_lshrrev_b32 v{vT2}, 5, v{vLANE}", f"v_xor_b32 v{vT1}, v{vT1}, v{vT2}",
      f"v_lshlrev_b32 v{vT1}, 4, v{vT1}", f"v_lshlrev_b32 v{vT0}, 7, v{vT0}", f"v_add_u32 v{vT0}, v{vT0}, v{vT1}", f"v_add_u32 v{vWR[0]}, s{sLB}, v{vT0}")
    for ks in range(1, 4): e(f"v_xor_b32 v{vWR[ks]}, {32*ks}, v{vWR[0]}")
    for i in range(128): e(f"v_mov_b32 v{ACC+i}, 0")
    e("s_barrier")
    D.stamp(1)
    e("s_waitcnt vmcnt(4)")
    e(f"v_add_f32 v{PS}, v{PS}, v{PS+2}", f"v_add_f32 v{PS+1}, v{PS+1}, v{PS+3}", f"v_add_f32 v{PS+4}, v{PS+4}, v{PS+6}", f"v_add_f32 v{PS+5}, v{PS+5}, v{PS+7}",
      f"v_add_f32 v{PS}, v{PS}, v{PS+4}", f"v_add_f32 v{PS+1}, v{PS+1}, v{PS+5}")
    for r in (PS, PS+1):
        e(f"v_mov_b32 v{vT0}, v{r}", "s_nop 1", f"v_permlane16_swap_b32 v{vT0}, v{r}", "s_nop 1", f"v_add_f32 v{r}, v{r}, v{vT0}",
          f"v_mov_b32 v{vT0}, v{r}", "s_nop 1", f"v_permlane32_swap_b32 v{vT0}, v{r}", "s_nop 1", f"v_add_f32 v{r}, v{r}, v{vT0}")
    e(f"v_mul_f32 v{PS}, {fbits(1/896)}, v{PS}", f"v_mul_f32 v{PS+1}, {fbits(1/896)}, v{PS+1}", f"v_fma_f32 v{PS+1}, -v{PS}, v{PS}, v{PS+1}", f"v_max_f32 v{PS+1}, 0, v{PS+1}",
      f"v_add_f32 v{PS+1}, {fbits(1e-5)}, v{PS+1}", f"v_rsq_f32 v{PS+1}, v{PS+1}", "s_nop 0", f"v_mul_f32 v{PS}, v{PS}, v{PS+1}", f"v_sub_f32 v{PS}, 0, v{PS}")
    e("s_nop 1", f"v_mov_b32_dpp v{PS}, v{PS} row_ror:8 row_mask:0xc bank_mask:0xf", f"v_mov_b32_dpp v{PS+1}, v{PS+1} row_ror:8 row_mask:0xc bank_mask:0xf", "s_nop 1")
    RB = W + 8; CB = W + 16
    for jx in range(8):
        e(f"v_mov_b32_dpp v{RB+jx}, v{PS+1} row_newbcast:{jx} row_mask:0xf bank_mask:0xf", f"v_mov_b32_dpp v{CB+jx}, v{PS} row_newbcast:{jx} row_mask:0xf bank_mask:0xf")
    e("s_waitcnt vmcnt(0)")
    TT = W + 24
    for fb in range(4):
        for p in range(4):
            R_ = RAW + 4*fb + p
            e(f"v_lshlrev_b32 v{TT}, 16, v{R_}", f"v_and_b32 v{TT+1}, 0xffff0000, v{R_}",
              f"v_fma_f32 v{TT}, v{TT}, v{RB+2*p}, v{CB+2*p}", f"v_fma_f32 v{TT+1}, v{TT+1}, v{RB+2*p+1}, v{CB+2*p+1}",
              f"v_cvt_pk_bf16_f32 v{R_}, v{TT}, v{TT+1}")
    e(f"s_add_u32 s{sT}, s{sQO}, {WS_Z2N}")
    for fb in range(4): e(f"buffer_store_dwordx4 {vr(RAW+4*fb,4)}, v{vZO}, {WSR}, s{sT} offen offset:{fb*1024} sc0 sc1")
    def wdma():
        o = []
        for n in range(8):
            o.append([f"s_add_u32 m0, s{sLB}, {n*1024}", f"s_add_u32 s{sT2}, s{sWO}, {n*32768}", f"buffer_load_dwordx4 v{vW0 if n % 2 == 0 else vW1}, s[{SRD_WSP}:{SRD_WSP+3}], s{sT2} offen lds"])
        o[-1] += [f"s_add_u32 s{sWO}, s{sWO}, 128", f"s_min_u32 s{sWO}, s{sWO}, {7*128}"]
        return o
    def zload(zb, fb): return [f"buffer_load_dwordx4 {vr(Z + 16*zb + 4*fb,4)}, v{vZO}, {WSR}, s{sZ} offen offset:{fb*1024} sc1"] + ([f"s_add_u32 s{sZ}, s{sZ}, 28672"] if fb == 3 else [])
    def wread(ks, tb): return f"ds_read_b128 {vr(W + 8*ks + 4*tb, 4)}, v{vWR[ks]} offset:{tb*4096}"
    def mm(zb, fb, tb, ks): a_ = ACC + 16*(fb*2+tb); return mfma32(vr(a_,16), vr(Z+16*zb+4*fb,4), vr(W+8*ks+4*tb,4), vr(a_,16))
    e(f"s_mov_b32 s{sWO}, 0")
    kv_fill(1)
    e("s_waitcnt vmcnt(24)")
    e(f"s_lshl_b32 s{sT}, s{sJ}, 9", f"s_lshl_b32 s{sT+1}, s{sKS}, 2", f"s_add_u32 s{sT}, s{sT}, s{sT+1}", f"s_add_u32 s{sT}, s{sT}, {WS_FLG}",
      f"v_mov_b32 v{vT0}, 0", f"v_mov_b32 v{vT1}, 1", f"buffer_store_dword v{vT1}, v{vT0}, {WSR}, s{sT} offen sc0 sc1")
    e(wdma())
    e("s_waitcnt vmcnt(9)", "s_barrier")
    D.stamp(2)
    e(f"s_lshl_b32 s{sT}, s{sJ}, 9", f"s_lshl_b32 s{sT+1}, s{sA}, 7", f"s_add_u32 s{sT}, s{sT}, s{sT+1}", f"s_add_u32 s{sT}, s{sT}, {WS_FLG}",
      f"v_and_b32 v{vT0}, 31, v{vLANE}", f"v_lshlrev_b32 v{vT0}, 2, v{vT0}", f"s_mov_b32 s{sCNT}, {SPIN_MAX}")
    A.label(f"L_{name}_poll")
    e(f"buffer_load_dword v{vT1}, v{vT0}, {WSR}, s{sT} offen sc0 sc1", "s_waitcnt vmcnt(0)", f"v_cmp_ne_u32 vcc, 1, v{vT1}", f"s_sub_u32 s{sCNT}, s{sCNT}, 1",
      f"s_cbranch_vccz L_{name}_pollok", f"s_cmp_eq_u32 s{sCNT}, 0", f"s_cbranch_scc1 L_{name}_pollok", "s_sleep 1", f"s_branch L_{name}_poll")
    A.label(f"L_{name}_pollok")
    D.stamp(3)
    e(f"s_mul_i32 s{sZ}, s{sA}, {32*28*1024}", f"s_lshl_b32 s{sT}, s{sJ}, 12", f"s_add_u32 s{sZ}, s{sZ}, s{sT}", f"s_add_u32 s{sZ}, s{sZ}, {WS_Z2N}")
    for zb in range(4):
        for fb in range(4): e(zload(zb, fb))
    for ks in range(4):
        for tb in range(2): e(wread(ks, tb))
    e("s_waitcnt lgkmcnt(0)")
    e(wdma())
    e(f"s_mov_b32 s{sCNT}, 8", f"s_setprio {cfg.get('prioB', 0)}")
    A.label(f"L_{name}_Bl")
    for jx in range(4):
        zb = jx
        if jx < 3: e("s_waitcnt vmcnt(20)")
        else: e("s_waitcnt vmcnt(12)")
        for fb in range(4):
            if not cfg.get('noM'): e(mm(zb, fb, 0, jx), mm(zb, fb, 1, jx))
            if not cfg.get('noZ'): e(zload(zb, fb))
            if jx == 3 and fb < 3 and not cfg.get('noWR'): e(wread(fb, 0), wread(fb, 1))
        if jx == 3:
            if not cfg.get('noWR'): e(wread(3, 0), wread(3, 1))
            e("s_waitcnt lgkmcnt(0)")
            if not cfg.get('noW'): e(wdma())
    e(f"s_sub_u32 s{sCNT}, s{sCNT}, 1", f"s_cmp_lg_u32 s{sCNT}, 0", f"s_cbranch_scc1 L_{name}_Bl")
    e("s_setprio 3", "s_waitcnt vmcnt(0)")
    D.stamp(4)
    e(f"s_lshl_b32 s{sT}, s{sI}, 1", f"s_mul_i32 s{sT}, s{sT}, 28", f"s_lshl_b32 s{sT+1}, s{sJ}, 2", f"s_add_u32 s{sT}, s{sT}, s{sT+1}", f"s_add_u32 s{sT}, s{sT}, s{sA}",
      f"s_lshl_b32 s{sT}, s{sT}, 11", f"s_add_u32 s{sT}, s{sT}, {WS_Z1}", f"s_add_u32 s{sT+1}, s{sT}, {28*2048}")
    for tb in range(2):
        for m in range(2): e(f"buffer_load_dwordx4 {vr(vZ1 + 8*tb + 4*m,4)}, v{vZO}, {WSR}, s{sT+tb} offen offset:{m*1024}")
    e(f"v_and_b32 v{vT0}, 31, v{vLANE}", f"v_lshlrev_b32 v{vT0}, 1, v{vT0}", f"s_lshl_b32 s{sT}, s{sI}, 7")
    for tb in range(2): e(f"buffer_load_ushort v{vB+tb}, v{vT0}, s[{SRD_BSP}:{SRD_BSP+3}], s{sT} offen offset:{tb*64}")
    if ctx and ctx.get('touchW3'): ctx['touchW3'](sA, sJ, sT, vLANE, vT1, vT2)
    e(f"v_lshlrev_b32 v{vT0}, 4, v{vLANE}")
    e("s_barrier")
    D.stamp(5)
    for bb in range(4):
        e(f"s_cmp_eq_u32 s{sA}, {bb}", f"s_cbranch_scc0 L_{name}_Bs{bb}")
        for d in range(4):
            if d == bb: continue
            pos = (bb - d - 1) & 3
            base = d*32768 + pos*8192
            e(f"v_add_u32 v{vT1}, {base}, v{vT0}" if base else f"v_mov_b32 v{vT1}, v{vT0}")
            for tb in range(2):
                for g in range(4): e(f"ds_write_b128 v{vT1}, {vr(ACC + 16*(d*2+tb) + 4*g, 4)} offset:{tb*4096 + g*1024}")
        e("s_waitcnt lgkmcnt(0)", "s_barrier", "s_barrier")
        e(f"v_add_u32 v{vT1}, {bb*32768}, v{vT0}" if bb else f"v_mov_b32 v{vT1}, v{vT0}")
        X = Z + 16
        for tb in range(2):
            a_ = ACC + 16*(bb*2+tb)
            for pos in range(3):
                for g in range(4): e(f"ds_read_b128 {vr(X+16*pos+4*g,4)}, v{vT1} offset:{pos*8192 + tb*4096 + g*1024}")
            for pos in range(3):
                e(f"s_waitcnt lgkmcnt({8-4*pos})")
                for p in range(8): e(f"v_pk_add_f32 {vr(a_+2*p,2)}, {vr(a_+2*p,2)}, {vr(X+16*pos+2*p,2)}")
            e("s_waitcnt vmcnt(0)" if tb == 0 else "s_nop 0")
            e(f"v_lshlrev_b32 v{vT2}, 16, v{vB+tb}")
            for p in range(8): e(f"v_pk_add_f32 {vr(a_+2*p,2)}, {vr(a_+2*p,2)}, {vr(vT2,2)} op_sel_hi:[1,0]")
            for p in range(8):
                zr = vZ1 + 8*tb + p
                e(f"v_lshlrev_b32 v{X}, 16, v{zr}", f"v_and_b32 v{X+1}, 0xffff0000, v{zr}", f"v_pk_mul_f32 {vr(X,2)}, {vr(X,2)}, {vr(a_+2*p,2)}",
                  f"v_cvt_pk_bf16_f32 v{zr}, v{X}, v{X+1}")
            e(f"s_lshl_b32 s{sT}, s{sI}, 1", f"s_add_u32 s{sT}, s{sT}, {tb}", f"s_mul_i32 s{sT}, s{sT}, 88", f"s_lshl_b32 s{sT+1}, s{sJ}, 3", f"s_add_u32 s{sT}, s{sT}, s{sT+1}",
              f"s_add_u32 s{sT}, s{sT}, {32 + 2*bb}", f"s_lshl_b32 s{sT}, s{sT}, 10", f"s_add_u32 s{sT}, s{sT}, {WS_ACT}")
            for m in range(2): e(f"buffer_store_dwordx4 {vr(vZ1 + 8*tb + 4*m,4)}, v{vZO}, {WSR}, s{sT} offen offset:{m*1024}{SC}")
        e(f"s_branch L_{name}_done")
        A.label(f"L_{name}_Bs{bb}")
    e(f"s_branch L_{name}_done")
    A.label(f"L_{name}_Bidle")
    e("s_barrier")
    kv_fill(1)
    e("s_waitcnt vmcnt(0)", "s_barrier", "s_barrier", "s_barrier", "s_barrier")
    A.label(f"L_{name}_done")
    if ctx:
        D.stamp(6)
        return dict(sI=sI, sJ=sJ, sW=sW, SRD_WS=SRD_WS, sT=sT, vLANE=vLANE)
    D.stamp(6)
    e("s_waitcnt vmcnt(0)")
    D.stamp(7)
    D.flush(4, sW)
    A.label(f"L_{name}_end")
    e("s_endpgm")
    return kernel_head(name) + A.text() + KD.format(name=name, vgpr=NV, sgpr=100, acc=NV)
```

```python
from asmlib import *

def p3_body(A, D, name, R, prefetch_hook=None):
    e = A.e
    sI, sJ, sW, sWO, sWOUT = R['sI'], R['sJ'], R['sW'], R['sWO'], R['sWOUT']
    SRD_WS, SRD_X, SRD_OUT, sT = R['SRD_WS'], R['SRD_X'], R['SRD_OUT'], R['sT']
    vLANE, vTID = R['vLANE'], R['vTID']
    WSR = f"s[{SRD_WS}:{SRD_WS+3}]"
    sACT, sLB, sKS, sBASE = sT+4, sT+5, sT+6, sT+2
    vT0, vT1, vT2 = 2, 3, 4
    vAO, vWG, vWR = 5, 6, 7
    vWR1 = 72
    ACC = 8
    AF = 76
    WF = 164
    XR = 180
    NST = 11; NSLOT = 8; SLOTB = 2048
    e(f"v_lshrrev_b32 v{vWG}, 3, v{vLANE}", f"v_lshlrev_b32 v{vWG}, 10, v{vWG}", f"v_bfe_u32 v{vT0}, v{vLANE}, 4, 1", f"v_lshlrev_b32 v{vT0}, 2, v{vT0}", f"v_xor_b32 v{vT0}, v{vT0}, v{vLANE}",
      f"v_and_b32 v{vT0}, 7, v{vT0}", f"v_lshlrev_b32 v{vT0}, 4, v{vT0}", f"v_add_u32 v{vWG}, v{vWG}, v{vT0}", f"s_lshl_b32 s{sT}, s{sJ}, 7", f"v_add_u32 v{vWG}, s{sT}, v{vWG}",
      f"s_lshl_b32 s{sLB}, s{sW}, 14", f"s_mul_i32 s{sKS}, s{sW}, {NST}")
    def wdma(st):
        slot = st % NSLOT
        o = [f"s_add_u32 s{sT}, s{sKS}, {st}", f"s_sub_u32 s{sT+1}, s{sT}, 32", f"s_cmp_lt_u32 s{sT}, 32", f"s_cselect_b32 s{sT}, s{sT}, s{sT+1}",
             f"s_cselect_b32 s{sBASE}, s{sWO}, s{sWOUT}", f"s_cselect_b32 s{sBASE+1}, s{sWO+1}, s{sWOUT+1}", f"s_lshl_b32 s{sT}, s{sT}, 14",
             f"s_add_u32 s{sBASE}, s{sBASE}, s{sT}", f"s_addc_u32 s{sBASE+1}, s{sBASE+1}, 0",
             f"s_add_u32 m0, s{sLB}, {slot*SLOTB}", "s_nop 0", f"global_load_lds_dwordx4 v{vWG}, s[{sBASE}:{sBASE+1}]",
             f"s_add_u32 s{sBASE}, s{sBASE}, 8192", f"s_addc_u32 s{sBASE+1}, s{sBASE+1}, 0",
             f"s_add_u32 m0, s{sLB}, {slot*SLOTB + 1024}", "s_nop 0", f"global_load_lds_dwordx4 v{vWG}, s[{sBASE}:{sBASE+1}]"]
        return o
    if prefetch_hook:
        R['flag']()
        e(f"s_cmp_eq_u32 s{sW}, 0", f"s_cbranch_scc1 L_{name}_nopf")
        for st in range(NSLOT): e(wdma(st))
        e(f"s_cmp_eq_u32 s{sW}, 1", f"s_cbranch_scc0 L_{name}_nopf")
        e(f"s_mov_b32 s{sLB}, 0", f"s_mov_b32 s{sKS}, 0")
        for st in range(NSLOT): e(wdma(st))
        e(f"s_lshl_b32 s{sLB}, s{sW}, 14", f"s_mul_i32 s{sKS}, s{sW}, {NST}")
        A.label(f"L_{name}_nopf")
    else:
        for st in range(NSLOT): e(wdma(st))
    e(f"v_lshrrev_b32 v{vWR}, 5, v{vLANE}", f"v_lshlrev_b32 v{vWR}, 2, v{vWR}", f"v_bfe_u32 v{vT0}, v{vLANE}, 2, 2", f"v_add_u32 v{vWR}, v{vWR}, v{vT0}", f"v_lshlrev_b32 v{vWR}, 7, v{vWR}",
      f"v_bfe_u32 v{vT0}, v{vLANE}, 3, 1", f"v_lshlrev_b32 v{vT0}, 6, v{vT0}", f"v_add_u32 v{vWR}, v{vWR}, v{vT0}",
      f"v_bfe_u32 v{vT0}, v{vLANE}, 4, 1", f"v_lshlrev_b32 v{vT0}, 5, v{vT0}", f"v_add_u32 v{vWR}, v{vWR}, v{vT0}", f"v_and_b32 v{vT0}, 3, v{vLANE}", f"v_lshlrev_b32 v{vT0}, 3, v{vT0}",
      f"v_add_u32 v{vWR}, v{vWR}, v{vT0}", f"v_add_u32 v{vWR}, s{sLB}, v{vWR}", f"v_xor_b32 v{vWR1}, 64, v{vWR}")
    e(f"v_lshrrev_b32 v{vT0}, 3, v{vTID}", f"s_lshl_b32 s{sT}, s{sI}, 6", f"v_add_u32 v{vT0}, s{sT}, v{vT0}", f"v_lshlrev_b32 v{vT0}, 10, v{vT0}", f"v_and_b32 v{vT1}, 7, v{vTID}", f"v_lshlrev_b32 v{vT1}, 4, v{vT1}",
      f"v_add_u32 v{vT0}, v{vT0}, v{vT1}", f"s_lshl_b32 s{sT}, s{sJ}, 7", f"v_add_u32 v{vT2}, s{sT}, v{vT0}")
    e(f"buffer_load_dwordx4 {vr(XR,4)}, v{vT2}, s[{SRD_X}:{SRD_X+3}], 0 offen")
    for i in range(64): e(f"v_mov_b32 v{ACC+i}, 0")
    e(f"s_lshl_b32 s{sT}, s{sI}, 1", f"s_mul_i32 s{sT}, s{sT}, 88", f"s_add_u32 s{sT}, s{sT}, s{sKS}", f"s_lshl_b32 s{sT}, s{sT}, 10", f"s_add_u32 s{sACT}, s{sT}, {WS_ACT}",
      f"v_lshlrev_b32 v{vAO}, 4, v{vLANE}")
    D.stamp(R.get('st0', 1))
    if prefetch_hook: prefetch_hook()
    sc = " sc1" if prefetch_hook else ""
    for st in range(NST):
        e(f"s_add_u32 s{sT}, s{sACT}, {st*1024}", f"buffer_load_dwordx4 {vr(AF + 8*st, 4)}, v{vAO}, {WSR}, s{sT} offen{sc}",
          f"s_add_u32 s{sT}, s{sT}, {88*1024}", f"buffer_load_dwordx4 {vr(AF + 8*st + 4, 4)}, v{vAO}, {WSR}, s{sT} offen{sc}")
    def wreads(st, buf):
        slot = st % NSLOT
        return [f"ds_read_b64_tr_b16 {vr(WF + 8*buf + 4*nb + 2*hf, 2)}, v{vWR if nb == 0 else vWR1} offset:{slot*SLOTB + hf*1024}" for nb in range(2) for hf in range(2)]
    e(f"s_waitcnt vmcnt({2*(NST-1)})", wreads(0, 0))
    ndma = 0
    for st in range(NST):
        buf = st % 2
        if st + 1 < NST:
            nxt = st + 1
            if nxt < NSLOT: e(f"s_waitcnt vmcnt({2*(NST-1-nxt) + ndma})")
            else: e(f"s_waitcnt vmcnt({2*(NST-1-nxt)})")
            e(wreads(nxt, 1-buf), "s_waitcnt lgkmcnt(4)")
        else:
            e("s_waitcnt lgkmcnt(0)")
        for nb in range(2):
            for tb in range(2):
                a_ = ACC + 16*(nb*2+tb)
                e(mfma32(vr(a_,16), vr(WF + 8*buf + 4*nb, 4), vr(AF + 8*st + 4*tb, 4), vr(a_,16)))
        if st + NSLOT < NST:
            e(wdma(st + NSLOT)); ndma += 2
    D.stamp(R.get('st1', R.get('st0', 1) + 1))
    e(nops(12), "s_barrier")
    RS = 272; PB = 64*RS
    e(f"v_and_b32 v{vT0}, 31, v{vLANE}", f"v_mul_u32_u24 v{vT0}, {RS}, v{vT0}", f"v_lshrrev_b32 v{vT1}, 5, v{vLANE}", f"v_lshlrev_b32 v{vT1}, 4, v{vT1}", f"v_add_u32 v{vT0}, v{vT0}, v{vT1}",
      f"s_mul_i32 s{sT}, s{sW}, {PB}", f"v_add_u32 v{vT0}, s{sT}, v{vT0}")
    for nb in range(2):
        for tb in range(2):
            for g in range(4): e(f"ds_write_b128 v{vT0}, {vr(ACC + 16*(nb*2+tb) + 4*g, 4)} offset:{tb*32*RS + nb*128 + g*32}")
    e("s_waitcnt lgkmcnt(0)", "s_barrier")
    e(f"v_lshrrev_b32 v{vT0}, 3, v{vTID}", f"v_mul_u32_u24 v{vT0}, {RS}, v{vT0}", f"v_and_b32 v{vT1}, 7, v{vTID}", f"v_lshlrev_b32 v{vT1}, 5, v{vT1}", f"v_add_u32 v{vT0}, v{vT0}, v{vT1}",
      f"v_add_u32 v{vT1}, {4*PB}, v{vT0}")
    R0 = AF
    for w in range(8):
        ad = vT0 if w < 4 else vT1
        for g in range(2): e(f"ds_read_b128 {vr(R0 + 8*w + 4*g, 4)}, v{ad} offset:{(w % 4)*PB + g*16}")
    e("s_waitcnt lgkmcnt(0) vmcnt(0)")
    for d in (32, 16, 8):
        for p in range(d // 2): e(f"v_pk_add_f32 {vr(R0+2*p,2)}, {vr(R0+2*p,2)}, {vr(R0+d+2*p,2)}")
    for p in range(4):
        xr = XR + p
        e(f"v_lshlrev_b32 v{vT0}, 16, v{xr}", f"v_and_b32 v{vT1}, 0xffff0000, v{xr}", f"v_add_f32 v{vT0}, v{vT0}, v{R0+2*p}", f"v_add_f32 v{vT1}, v{vT1}, v{R0+2*p+1}",
          f"v_cvt_pk_bf16_f32 v{xr}, v{vT0}, v{vT1}")
    e(f"buffer_store_dwordx4 {vr(XR,4)}, v{vT2}, s[{SRD_OUT}:{SRD_OUT+3}], 0 offen")

def gen_p3(name, cfg=None):
    cfg = cfg or {}
    A = Asm(); e = A.e
    D = Diag(A, cfg.get('diag'), 2)
    sX, sWO, sWOUT, sOUT, sWS = 4, 6, 8, 10, 12
    SRD_WS, SRD_X, SRD_OUT = 16, 20, 24
    sI, sJ, sW = 36, 37, 38
    sT = 40
    e("s_cmp_ge_u32 s2, 256", f"s_cbranch_scc1 L_{name}_end")
    e("s_load_dwordx2 s[4:5], s[0:1], 0", "s_load_dwordx2 s[6:7], s[0:1], 32", "s_load_dwordx4 s[8:11], s[0:1], 72", "s_load_dwordx2 s[12:13], s[0:1], 96")
    D.init(); D.stamp(0)
    e(f"v_and_b32 v1, 63, v0", f"v_lshrrev_b32 v2, 6, v0", "s_nop 0", f"v_readfirstlane_b32 s{sW}, v2")
    e(f"s_and_b32 s{sT}, s2, 7", f"s_lshr_b32 s{sT+1}, s2, 3", f"s_and_b32 s{sJ}, s{sT+1}, 7", f"s_lshr_b32 s{sI}, s{sT+1}, 3", f"s_lshl_b32 s{sI}, s{sI}, 3", f"s_add_u32 s{sI}, s{sI}, s{sT}")
    e("s_waitcnt lgkmcnt(0)")
    e(srd(SRD_WS, sWS, WS_END), srd(SRD_X, sX, 2048*1024), srd(SRD_OUT, sOUT, 2048*1024))
    p3_body(A, D, name, dict(sI=sI, sJ=sJ, sW=sW, sWO=sWO, sWOUT=sWOUT, SRD_WS=SRD_WS, SRD_X=SRD_X, SRD_OUT=SRD_OUT, sT=sT, vLANE=1, vTID=0))
    D.stamp(3)
    e("s_waitcnt vmcnt(0)")
    D.stamp(4)
    D.flush(sWS, sW)
    A.label(f"L_{name}_end")
    e("s_endpgm")
    return kernel_head(name) + A.text() + KD.format(name=name, vgpr=192, sgpr=100, acc=192)
```

```python
from asmlib import *
from p1 import gen_p1
from p2 import gen_p2, SPIN_MAX
from p3 import p3_body

def gen_p23(name, cfg=None):
    cfg = cfg or {}
    A = Asm(); e = A.e
    D = Diag(A, cfg.get('diag'), 1)
    ctx = dict(A=A, D=D)
    e("s_cmp_ge_u32 s2, 256", f"s_cbranch_scc1 L_{name}_end")
    D.init()
    D.remap = {0: 0, 2: 6, 3: 7, 4: 8, 6: 9}
    R2 = gen_p2(name + "_p2", cfg.get('p2'), ctx)
    sI, sJ, sW, SRD_WS, sT = R2['sI'], R2['sJ'], R2['sW'], R2['SRD_WS'], R2['sT']
    SRD_X, SRD_OUT, sWO, sWOUT = 48, 52, 46, 62
    e(f"s_load_dwordx2 s[{SRD_X}:{SRD_X+1}], s[0:1], 0", f"s_load_dwordx2 s[{SRD_OUT}:{SRD_OUT+1}], s[0:1], 80",
      f"s_load_dwordx2 s[{sWO}:{sWO+1}], s[0:1], 32", f"s_load_dwordx2 s[{sWOUT}:{sWOUT+1}], s[0:1], 72")
    e("s_setprio 0", "s_waitcnt vmcnt(0) lgkmcnt(0)", "s_barrier")
    e(f"s_mov_b32 s{SRD_X+2}, {2048*1024}", f"s_mov_b32 s{SRD_X+3}, 0x00020000", f"s_mov_b32 s{SRD_OUT+2}, {2048*1024}", f"s_mov_b32 s{SRD_OUT+3}, 0x00020000")
    WSR = f"s[{SRD_WS}:{SRD_WS+3}]"
    def flag():
        e(f"s_cmp_eq_u32 s{sW}, 0", f"s_cbranch_scc0 L_{name}_nofl")
        e(f"s_lshl_b32 s{sT}, s{sI}, 10", f"s_lshl_b32 s{sT+1}, s{sJ}, 7", f"s_add_u32 s{sT+1}, s{sT+1}, s{sT}", f"s_add_u32 s{sT+1}, s{sT+1}, {WS_FL3}",
          "v_mov_b32 v2, 0", "v_mov_b32 v3, 1", f"buffer_store_dword v3, v2, {WSR}, s{sT+1} offen sc0 sc1")
        A.label(f"L_{name}_nofl")
    def hook():
        e(f"s_cmp_eq_u32 s{sW}, 0", f"s_cbranch_scc0 L_{name}_p3ok")
        e(f"s_lshl_b32 s{sT}, s{sI}, 10", f"s_add_u32 s{sT}, s{sT}, {WS_FL3}",
          f"v_and_b32 v2, 7, v{R2['vLANE']}", "v_lshlrev_b32 v2, 7, v2", f"s_mov_b32 s{sT+2}, {SPIN_MAX}")
        A.label(f"L_{name}_p3p")
        e(f"buffer_load_dword v3, v2, {WSR}, s{sT} offen sc0 sc1", "s_waitcnt vmcnt(0)", "v_cmp_ne_u32 vcc, 1, v3", f"s_sub_u32 s{sT+2}, s{sT+2}, 1",
          f"s_cbranch_vccz L_{name}_p3ok", f"s_cmp_eq_u32 s{sT+2}, 0", f"s_cbranch_scc1 L_{name}_p3ok", "s_sleep 1", f"s_branch L_{name}_p3p")
        A.label(f"L_{name}_p3ok")
        e("s_waitcnt vmcnt(0)", "s_barrier")
        D.stamp(2)
    D.remap = {1: 10, 2: 11, 5: 12}
    p3_body(A, D, name + "_p3", dict(sI=sI, sJ=sJ, sW=sW, sWO=sWO, sWOUT=sWOUT, SRD_WS=SRD_WS, SRD_X=SRD_X, SRD_OUT=SRD_OUT, sT=sT, vLANE=R2['vLANE'], vTID=0, st0=1, st1=5, flag=flag), hook)
    D.remap = None
    D.stamp(13)
    e("s_waitcnt vmcnt(0)")
    D.stamp(14)
    D.flush(4, sW)
    A.label(f"L_{name}_end")
    e("s_endpgm")
    return kernel_head(name) + A.text() + KD.format(name=name, vgpr=256, sgpr=100, acc=256)

def mega_asm(cfg=None):
    cfg = cfg or {}
    d = cfg.get('diag')
    s = "; generated by gen/mega.py : two launches (projections | attention + spatial gating + output projection)\n"
    s += "; @launch kernel=p1_kernel grid=(256,1,1) block=(512,1,1) lds=153600\n"
    s += "; @launch kernel=p23_kernel grid=(256,1,1) block=(512,1,1) lds=163840\n"
    s += '.amdgcn_target "amdgcn-amd-amdhsa--gfx950"\n'
    s += gen_p1('p1_kernel', dict(cfg.get('p1') or {}, diag=d)) + gen_p23('p23_kernel', cfg)
    return s
if __name__ == '__main__':
    import sys
    out = sys.argv[1] if len(sys.argv) > 1 else 'parallel_sum__grouped_kv_mqa__mixer_gmlp__prompt.s'
    open(out, 'w').write(mega_asm())
    print('written', out)
```

```python
from asmlib import *

SLOT = 36864
LDS_STATS = 147456
LDS_CS = LDS_STATS + 2048
C1 = -2.0 * 1.4426950408889634 * 0.7978845608028654
C3 = C1 * 0.044715
QSCALE = 0.25 * 1.4426950408889634

import struct
def fbits(x): return "0x%08x" % struct.unpack("<I", struct.pack("<f", x))[0]

def gelu_block(A, acc, T, vr_r, sC3, vC1):
    P = range(8)
    for p in P: A.e(f"v_pk_mul_f32 {vr(acc+2*p,2)}, {vr(acc+2*p,2)}, {vr(vr_r,2)} op_sel_hi:[1,0]")
    for p in P: A.e(f"v_pk_mul_f32 {vr(T+2*p,2)}, {vr(acc+2*p,2)}, {vr(acc+2*p,2)}")
    for p in P: A.e(f"v_pk_fma_f32 {vr(T+2*p,2)}, {vr(T+2*p,2)}, {sr(sC3,2)}, {vr(vC1,2)}")
    for p in P: A.e(f"v_pk_mul_f32 {vr(T+2*p,2)}, {vr(T+2*p,2)}, {vr(acc+2*p,2)}")
    for i in range(16): A.e(f"v_exp_f32 v{T+i}, v{T+i}")
    for p in P: A.e(f"v_pk_add_f32 {vr(T+2*p,2)}, {vr(T+2*p,2)}, 1.0 op_sel_hi:[1,0]")
    for i in range(16): A.e(f"v_rcp_f32 v{T+i}, v{T+i}")
    for p in P: A.e(f"v_pk_mul_f32 {vr(acc+2*p,2)}, {vr(acc+2*p,2)}, {vr(T+2*p,2)}")

def gen_p1(name, cfg=None, ctx=None):
    cfg = cfg or {}
    A = ctx['A'] if ctx else Asm(); e = A.e
    D = ctx['D'] if ctx else Diag(A, cfg.get('diag'), 0)
    SC = " sc0 sc1" if ctx else ""
    sX, sWQ, sWK, sWV, sWIN, sWS = 4, 6, 8, 10, 12, 14
    SRD_X, SRD_WS = 16, 20
    sI, sJ, sW, sTB, sROLE = 24, 25, 26, 27, 28
    sTMP = 29
    sC, sCUR, sNXT, sXOFF, sDST = 36, 37, 38, 39, 40
    sSTEP = 41
    sC3 = 44
    sTBG = 46
    sONES = 47
    sB = 48
    vLANE = 1
    vXO = [2, 3]
    vXB = [4, 5, 6, 7]
    vWB = [8, 9, 10, 11]
    vAX = 12; vAW = [13, 53, 13, 53]; vAW1 = 48; vAWQ = 49
    vQB = [128+2, 128+3, 140+1, 140+2]
    vT0, vT1 = 14, 15
    XF = [16, 20, 224, 228]
    WF = [[24 + 4*b for b in range(3)], [36 + 4*b for b in range(3)], [232 + 4*b for b in range(3)], [244 + 4*b for b in range(3)]]
    vCS = [48, 49, 50]
    vS1, vS2 = 51, 52
    mCS = [160, 176, 192]
    vQ1 = [208, 209]
    vQ2 = [210, 211]
    vU = [212, 213, 214, 215, 216, 217, 218, 219]
    vONE = 220
    vG = [54, 56, 58]
    vR = 60
    vMU = 62
    ACC = [64, 80, 96]
    TMP = 112
    vC1 = 128
    vCORB = 132
    vCORA = 136
    vST = 140
    vP = 144
    vTR = 152
    NV = 256

    if not ctx: e("s_cmp_ge_u32 s2, 256", f"s_cbranch_scc1 L_{name}_end")
    e(f"s_load_dwordx4 s[4:7], s[0:1], 0", f"s_load_dwordx4 s[8:11], s[0:1], 16", f"s_load_dwordx2 s[12:13], s[0:1], 48", f"s_load_dwordx2 s[14:15], s[0:1], 96")
    if not ctx: D.init()
    D.stamp(0)
    e(f"v_and_b32 v{vLANE}, 63, v0", f"v_lshrrev_b32 v{vT0}, 6, v0", "s_nop 0", f"v_readfirstlane_b32 s{sW}, v{vT0}")
    e(f"s_and_b32 s{sTMP}, s2, 7", f"s_lshr_b32 s{sTMP+1}, s2, 3",
      f"s_lshr_b32 s{sI}, s{sTMP}, 1", f"s_lshl_b32 s{sI}, s{sI}, 2", f"s_lshr_b32 s{sTMP+2}, s{sTMP+1}, 3", f"s_add_u32 s{sI}, s{sI}, s{sTMP+2}",
      f"s_and_b32 s{sJ}, s{sTMP}, 1", f"s_lshl_b32 s{sJ}, s{sJ}, 3", f"s_and_b32 s{sTMP+2}, s{sTMP+1}, 7", f"s_add_u32 s{sJ}, s{sJ}, s{sTMP+2}")
    e(f"s_and_b32 s{sTB}, s{sW}, 3", f"s_lshr_b32 s{sROLE}, s{sW}, 2")
    e(f"s_lshl_b32 s{sTBG}, s{sI}, 2", f"s_add_u32 s{sTBG}, s{sTBG}, s{sTB}")
    e(f"s_mov_b32 s{sONES}, 0x3f803f80", f"s_mov_b32 s{sC3}, {fbits(C3)}", f"s_mov_b32 s{sC3+1}, {fbits(C3)}")
    e(f"v_mov_b32 v{vC1}, {fbits(C1)}", f"v_mov_b32 v{vC1+1}, {fbits(C1)}")
    e(f"s_lshl_b32 s{sTMP}, s{sI}, 7", f"s_lshl_b32 s{sTMP+1}, s{sW}, 4", f"s_add_u32 s{sTMP}, s{sTMP}, s{sTMP+1}", f"s_lshl_b32 s{sTMP}, s{sTMP}, 10")
    for q in range(2):
        e(f"v_lshrrev_b32 v{vT0}, 4, v{vLANE}")
        if q: e(f"v_add_u32 v{vT0}, 4, v{vT0}")
        e(f"v_xor_b32 v{vT0}, v{vT0}, v{vLANE}", f"v_and_b32 v{vT0}, 7, v{vT0}", f"v_lshlrev_b32 v{vT0}, 4, v{vT0}",
          f"v_lshrrev_b32 v{vT1}, 3, v{vLANE}", f"v_lshlrev_b32 v{vT1}, 10, v{vT1}", f"v_add_u32 v{vT0}, v{vT0}, v{vT1}",
          f"v_add_u32 v{vXO[q]}, s{sTMP}, v{vT0}")
        if q: e(f"v_add_u32 v{vXO[q]}, 0x2000, v{vXO[q]}")
    e(f"v_and_b32 v{vT0}, 31, v{vLANE}", f"v_lshrrev_b32 v{vT1}, 1, v{vT0}", f"v_and_b32 v{vT1}, 7, v{vT1}",
      f"v_lshrrev_b32 v{vAX}, 5, v{vLANE}", f"v_xor_b32 v{vT1}, v{vT1}, v{vAX}", f"v_lshlrev_b32 v{vT1}, 4, v{vT1}",
      f"v_lshlrev_b32 v{vT0}, 7, v{vT0}", f"v_add_u32 v{vT0}, v{vT0}, v{vT1}", f"s_lshl_b32 s{sTMP}, s{sTB}, 12", f"v_add_u32 v{vT0}, s{sTMP}, v{vT0}")
    e(f"v_lshrrev_b32 v{vT1}, 5, v{vLANE}", f"v_lshlrev_b32 v{vT1}, 3, v{vT1}", f"v_bfe_u32 v{vAW[0]}, v{vLANE}, 2, 2", f"v_add_u32 v{vT1}, v{vT1}, v{vAW[0]}",
      f"v_bfe_u32 v{vAW1}, v{vLANE}, 4, 1", f"v_lshlrev_b32 v{vAW1}, 5, v{vAW1}", f"v_and_b32 v{vAWQ}, 3, v{vLANE}", f"v_lshlrev_b32 v{vAWQ}, 3, v{vAWQ}", f"v_add_u32 v{vAW1}, v{vAW1}, v{vAWQ}",
      f"v_lshlrev_b32 v{vAWQ}, 6, v{vT1}", f"v_add_u32 v{vAWQ}, v{vAWQ}, v{vAW1}",
      f"v_lshlrev_b32 v{vT1}, 7, v{vT1}", f"v_add_u32 v{vT1}, v{vT1}, v{vAW1}", f"v_bfe_u32 v{vAW1}, v{vLANE}, 3, 1", f"v_lshlrev_b32 v{vAW1}, 6, v{vAW1}", f"v_add_u32 v{vT1}, v{vT1}, v{vAW1}")
    for sp in range(4):
        e(f"s_add_u32 s{sTMP}, s{sTB}, {sp}", f"s_and_b32 s{sTMP}, s{sTMP}, 3", f"s_lshl_b32 s{sTMP+1}, s{sTMP}, 5", f"s_lshl_b32 s{sTMP+2}, s{sTMP}, 11", f"s_lshl_b32 s{sTMP+3}, s{sTMP}, 10",
          f"v_xor_b32 v{vXB[sp]}, s{sTMP+1}, v{vT0}", f"v_add_u32 v{vWB[sp]}, s{sTMP+2}, v{vT1}", f"v_add_u32 v{vQB[sp]}, s{sTMP+3}, v{vAWQ}")
    e("s_waitcnt lgkmcnt(0)")
    e(srd(SRD_X, sX, 2048*1024), srd(SRD_WS, sWS, WS_END))
    vROW, vPC = vXB[0] + 0, vXB[1] + 0
    vROW, vPC = TMP, TMP + 1
    e(f"v_lshrrev_b32 v{vROW}, 3, v{vLANE}", f"s_lshl_b32 s{sTMP}, s{sTB}, 4", f"v_add_u32 v{vROW}, s{sTMP}, v{vROW}",
      f"v_bfe_u32 v{vPC}, v{vLANE}, 4, 1", f"v_lshlrev_b32 v{vPC}, 2, v{vPC}", f"v_xor_b32 v{vPC}, v{vPC}, v{vLANE}", f"v_and_b32 v{vPC}, 7, v{vPC}", f"v_lshlrev_b32 v{vPC}, 4, v{vPC}")
    def pair_addr(ptr, coloff_s, stride):
        e(f"s_add_u32 s{sB}, s{ptr}, s{coloff_s}", f"s_addc_u32 s{sB+1}, s{ptr+1}, 0", f"s_mov_b32 s{sB+2}, {stride}",
          f"v_mul_lo_u32 v{vAX}, v{vROW}, s{sB+2}", f"v_add_u32 v{vAX}, v{vAX}, v{vPC}",
          f"v_mov_b32 v{vG[0]+1}, s{sB+1}", f"v_add_co_u32 v{vG[0]}, vcc, s{sB}, v{vAX}", f"v_addc_co_u32 v{vG[0]+1}, vcc, 0, v{vG[0]+1}, vcc",
          f"v_add_co_u32 v{vG[1]}, vcc, {8*stride}, v{vG[0]}", f"v_addc_co_u32 v{vG[1]+1}, vcc, 0, v{vG[0]+1}, vcc",
          f"s_mov_b32 s{sSTEP}, {64*stride}", f"s_mov_b32 s{sSTEP+1}, {64*stride}")
    e(f"s_cmp_eq_u32 s{sROLE}, 0", f"s_cbranch_scc0 L_{name}_addrY")
    e(f"s_cmp_lt_u32 s{sJ}, 14", f"s_cselect_b32 s{sTMP}, s{sJ}, 0", f"s_lshl_b32 s{sTMP}, s{sTMP}, 7")
    pair_addr(sWIN, sTMP, 3584)
    e(f"v_lshrrev_b32 v{vT0}, 2, v{vLANE}", f"s_lshl_b32 s{sTMP}, s{sTB}, 4", f"v_add_u32 v{vT0}, s{sTMP}, v{vT0}", f"v_and_b32 v{vT1}, 3, v{vLANE}", f"v_lshlrev_b32 v{vT1}, 4, v{vT1}",
      f"s_lshl_b32 s{sTMP}, s{sJ}, 6", f"s_add_u32 s{sB}, s{sWQ}, s{sTMP}", f"s_addc_u32 s{sB+1}, s{sWQ+1}, 0",
      f"v_lshlrev_b32 v{vAX}, 10, v{vT0}", f"v_add_u32 v{vAX}, v{vAX}, v{vT1}",
      f"v_mov_b32 v{vG[2]+1}, s{sB+1}", f"v_add_co_u32 v{vG[2]}, vcc, s{sB}, v{vAX}", f"v_addc_co_u32 v{vG[2]+1}, vcc, 0, v{vG[2]+1}, vcc", f"s_mov_b32 s{sSTEP+2}, {64*1024}")
    e(f"s_cmp_eq_u32 s{sJ}, 14", f"s_cbranch_scc0 L_{name}_addrDone")
    e(f"v_lshlrev_b32 v{vAX}, 5, v{vROW}", f"v_and_b32 v{vT0}, 16, v{vPC}", f"v_add_u32 v{vAX}, v{vAX}, v{vT0}",
      f"v_and_b32 v{vT0}, 0x60, v{vPC}", f"v_cmp_eq_u32 vcc, 32, v{vT0}",
      f"v_mov_b32 v{vAW[0]}, s{sWK}", f"v_mov_b32 v{vG[0]+1}, s{sWK+1}", f"v_mov_b32 v{vG[0]}, s{sWV}", f"v_mov_b32 v{vT1}, s{sWV+1}",
      f"v_cndmask_b32 v{vAW[0]}, v{vAW[0]}, v{vG[0]}, vcc", f"v_cndmask_b32 v{vG[0]+1}, v{vG[0]+1}, v{vT1}, vcc",
      f"v_add_co_u32 v{vG[0]}, vcc, v{vAW[0]}, v{vAX}", f"v_addc_co_u32 v{vG[0]+1}, vcc, 0, v{vG[0]+1}, vcc",
      f"v_add_co_u32 v{vG[1]}, vcc, {8*32}, v{vG[0]}", f"v_addc_co_u32 v{vG[1]+1}, vcc, 0, v{vG[0]+1}, vcc",
      f"s_mov_b32 s{sSTEP}, {64*32}", f"s_mov_b32 s{sSTEP+1}, {64*32}")
    e(f"s_branch L_{name}_addrDone")
    A.label(f"L_{name}_addrY")
    e(f"s_cmp_lt_u32 s{sJ}, 14", f"s_cselect_b32 s{sTMP}, s{sJ}, 0", f"s_lshl_b32 s{sTMP}, s{sTMP}, 7", f"s_add_u32 s{sTMP}, s{sTMP}, 1792")
    pair_addr(sWIN, sTMP, 3584)
    e(f"v_mov_b32 v{vG[2]}, v{vG[1]}", f"v_mov_b32 v{vG[2]+1}, v{vG[1]+1}", f"s_mov_b32 s{sSTEP+2}, 0")
    A.label(f"L_{name}_addrDone")

    WOFF = {0: 16384, 1: 16384 + 12288}
    QOFF = 16384 + 8192
    def dma_pieces(nb, blk0, slot_s):
        P = []
        for q in range(2):
            o = []
            if q == 0: o += [f"s_lshl_b32 s{sDST}, s{sW}, 11", f"s_add_u32 s{sDST}, s{sDST}, s{slot_s}"]
            o += [f"s_add_u32 m0, s{sDST}, {q*1024}", "s_nop 0", f"buffer_load_dwordx4 v{vXO[q]}, s[{SRD_X}:{SRD_X+3}], s{sXOFF} offen lds" if not cfg.get('noX') else "s_nop 0"]
            if q == 1: o += [f"s_add_u32 s{sXOFF}, s{sXOFF}, 128"]
            P.append(o)
        role_ = 0 if nb == 3 else 1
        for b in range(nb):
            o = []
            if b == 0: o += [f"s_lshl_b32 s{sDST}, s{sTB}, 11", f"s_add_u32 s{sDST}, s{sDST}, s{slot_s}"]
            if b == 2: o += [f"s_lshl_b32 s{sDST}, s{sTB}, 10", f"s_add_u32 s{sDST}, s{sDST}, s{slot_s}"]
            dst = WOFF[role_] + b*1024 if b < 2 else QOFF
            o += [f"s_add_u32 m0, s{sDST}, {dst}", "s_nop 0", f"global_load_lds_dwordx4 {vr(vG[b],2)}, off" if not cfg.get('noW') else "s_nop 0",
                  f"v_add_co_u32 v{vG[b]}, vcc, s{sSTEP+b}, v{vG[b]}", f"v_addc_co_u32 v{vG[b]+1}, vcc, 0, v{vG[b]+1}, vcc"]
            P.append(o)
        return P
    def dma_chunk(nb, blk0, slot_s):
        return [x for p in dma_pieces(nb, blk0, slot_s) for x in p]
    def read_groups(nb, blk0, sp, buf, slot_s):
        role_ = 0 if nb == 3 else 1
        G = [[f"v_add_u32 v{vAX}, s{slot_s}, v{vXB[sp]}", f"v_add_u32 v{vAW[buf]}, s{slot_s}, v{vWB[sp]}", f"ds_read_b128 {vr(XF[buf],4)}, v{vAX}"]]
        for b in range(nb):
            if b == 0: ad, off, d2 = vAW[buf], WOFF[role_], 512
            elif b == 1: ad, off, d2 = vAW1, WOFF[role_], 512
            else: ad, off, d2 = vAWQ, QOFF, 256
            g = []
            if b == 1: g.append(f"v_xor_b32 v{vAW1}, 64, v{vAW[buf]}")
            if b == 2: g.append(f"v_add_u32 v{vAWQ}, s{slot_s}, v{vQB[sp]}")
            g += [f"ds_read_b64_tr_b16 {vr(WF[buf][b],2)}, v{ad} offset:{off}", f"ds_read_b64_tr_b16 {vr(WF[buf][b]+2,2)}, v{ad} offset:{off+d2}"]
            if b == 0: G[0] += g
            else: G.append(g)
        if cfg.get('noR'): G = [G[0][:2]] + [[] for _ in range(nb-1)]
        if cfg.get('noAddr'):
            G[0] = G[0][2:]
            G = [[x.replace(f", v{vAX}", f", v{vXB[sp]}").replace(f", v{vAW[buf]} ", f", v{vWB[sp]} ") for x in g] for g in G]
        return G

    def main(role):
        nb = 3 if role == 0 else 2
        blk0 = 0 if role == 0 else 3
        n = 2 + nb
        L = f"L_{name}_r{role}"
        e(f"s_mov_b32 s{sXOFF}, 0")
        if cfg.get('prio', (0, 0))[role]: e(f"s_setprio {cfg.get('prio', (0, 0))[role]}")
        for c in range(3):
            e(f"s_mov_b32 s{sTMP}, {c*SLOT}")
            e(dma_chunk(nb, blk0, sTMP))
        D.stamp(1)
        for b in range(nb):
            for i in range(16): e(f"v_mov_b32 v{ACC[b]+i}, 0")
            for i in range(16): e(f"v_mov_b32 v{mCS[b]+i}, 0")
        for i in range(2): e(f"v_mov_b32 v{vQ1[i]}, 0", f"v_mov_b32 v{vQ2[i]}, 0")
        for i in range(4): e(f"v_mov_b32 v{vONE+i}, 0x3f803f80")
        e(f"s_waitcnt vmcnt({2*n})", "s_barrier")
        D.stamp(2)
        e(f"s_mov_b32 s{sC}, 0", f"s_mov_b32 s{sCUR}, 0", f"s_mov_b32 s{sNXT}, {SLOT}")
        e([x for g in read_groups(nb, blk0, 0, 0, sCUR) for x in g])
        e([x for g in read_groups(nb, blk0, 1, 1, sCUR) for x in g])
        m44 = lambda d, a_, b_: f"v_mfma_f32_4x4x4_16b_bf16 {vr(d,4)}, {vr(a_,2)}, {vr(b_,2)}, {vr(d,4)}"
        def body(with_dma, Ln):
            for sp in range(4):
                buf = sp
                pieces = []
                if sp == 2:
                    if with_dma:
                        e(f"s_waitcnt vmcnt({n})", "s_barrier" if not cfg.get('noB') else "s_nop 0",
                          f"s_add_u32 s{sTMP}, s{sC}, 3", f"s_and_b32 s{sTMP}, s{sTMP}, 3", f"s_mul_i32 s{sTMP}, s{sTMP}, {SLOT}")
                    else:
                        nt = 2 if (role == 0 and not cfg.get('notouch')) else 0
                        e(f"s_cmp_eq_u32 s{sC}, 7", f"s_cbranch_scc1 {Ln}_nob", f"s_cmp_eq_u32 s{sC}, 6", f"s_cbranch_scc1 {Ln}_w0",
                          f"s_waitcnt vmcnt({n+nt})", f"s_branch {Ln}_bar", f"{Ln}_w0:", f"s_waitcnt vmcnt({nt})", f"{Ln}_bar:", "s_barrier" if not cfg.get('noB') else "s_nop 0", f"{Ln}_nob:")
                if with_dma and sp >= 2 and not cfg.get('noP'):
                    allp = dma_pieces(nb, blk0, sTMP)
                    h = (len(allp) + 1) // 2
                    pieces = allp[:h] if sp == 2 else allp[h:]
                G = read_groups(nb, blk0, (sp+2) % 4, (sp+2) % 4, sCUR if sp < 2 else sNXT)
                nr = [len([x for x in g if x.startswith('ds_')]) for g in G]
                sq = []
                if not cfg.get('noD'):
                    for i in range(2):
                        xr = XF[buf] + 2*role + i
                        sq.append([f"v_lshlrev_b32 v{vU[2*i]}, 16, v{xr}", f"v_and_b32 v{vU[2*i+1]}, 0xffff0000, v{xr}"])
                    for i in range(2):
                        sq.append([f"v_add_f32 v{vQ1[0]}, v{vQ1[0]}, v{vU[2*i]}", f"v_add_f32 v{vQ1[1]}, v{vQ1[1]}, v{vU[2*i+1]}"])
                        sq.append([f"v_fma_f32 v{vQ2[0]}, v{vU[2*i]}, v{vU[2*i]}, v{vQ2[0]}", f"v_fma_f32 v{vQ2[1]}, v{vU[2*i+1]}, v{vU[2*i+1]}, v{vQ2[1]}"])
                for b in range(nb):
                    pend = sum(nr[b+1:]) + sum(nr) + sum(nr[:b])
                    e(f"s_waitcnt lgkmcnt({pend})")
                    if not cfg.get('noM'): e(mfma32(vr(ACC[b],16), vr(WF[buf][b],4), vr(XF[buf],4), vr(ACC[b],16)))
                    e(G[b])
                    if pieces: e(pieces.pop(0))
                    for _ in range(2 if nb == 3 else 3):
                        if sq: e(sq.pop(0))
                if not cfg.get('noD'):
                    while sq: e(sq.pop(0))
                    if sp == 0 and not cfg.get('noCS'):
                        for b in range(nb): e(mfma32(vr(mCS[b],16), vr(vONE,4), vr(WF[buf][b],4), vr(mCS[b],16)))
                while pieces: e(pieces.pop(0))
            if cfg.get('chunkstamp'):
                for k in range(14, 7, -1): e(f"s_mov_b32 s{65+2*k}, s{65+2*(k-1)}", f"s_mov_b32 s{64+2*k}, 1")
                e("s_memtime s[98:99]", "s_waitcnt lgkmcnt(0)", f"s_mov_b32 s{65+2*7}, s98", f"s_mov_b32 s{64+2*7}, 1")
            e(f"s_add_u32 s{sC}, s{sC}, 1", f"s_mov_b32 s{sCUR}, s{sNXT}", f"s_add_u32 s{sTMP}, s{sC}, 1", f"s_and_b32 s{sTMP}, s{sTMP}, 3", f"s_mul_i32 s{sNXT}, s{sTMP}, {SLOT}")
        A.label(L)
        body(True, L)
        e(f"s_cmp_lt_u32 s{sC}, 5", f"s_cbranch_scc1 {L}")
        if role == 0 and not cfg.get('notouch'):
            vTA, vTD = 132, 134
            e(f"s_load_dwordx2 s[{sB}:{sB+1}], s[0:1], 56", f"s_load_dwordx2 s[{sB+2}:{sB+3}], s[0:1], 32", f"s_load_dwordx2 s[{sB+4}:{sB+5}], s[0:1], 72",
              f"s_lshl_b32 s{sTMP}, s2, 2", f"s_add_u32 s{sTMP}, s{sTMP}, s{sTB}", f"s_lshl_b32 s{sTMP}, s{sTMP}, 13", f"v_lshlrev_b32 v{vTA}, 7, v{vLANE}", f"v_add_u32 v{vTA}, s{sTMP}, v{vTA}",
              "s_waitcnt lgkmcnt(0)", f"global_load_dword v{vTD}, v{vTA}, s[{sB}:{sB+1}]")
            e(f"s_lshl_b32 s{sTMP}, s2, 2", f"s_add_u32 s{sTMP}, s{sTMP}, s{sTB}", f"s_mul_i32 s{sTMP}, s{sTMP}, 11", f"v_min_u32 v{vTA}, 10, v{vLANE}", f"v_add_u32 v{vTA}, s{sTMP}, v{vTA}",
              f"v_cmp_gt_u32 vcc, 4096, v{vTA}", f"v_subrev_u32 v{vTA+1}, 4096, v{vTA}", f"v_mov_b32 v{vTD+2}, s{sB+4}", f"v_mov_b32 v{vTD+3}, s{sB+5}", f"v_mov_b32 v{vTD+4}, s{sB+2}", f"v_mov_b32 v{vTD+5}, s{sB+3}",
              f"v_cndmask_b32 v{vTA}, v{vTA+1}, v{vTA}, vcc", f"v_cndmask_b32 v{vTD+2}, v{vTD+2}, v{vTD+4}, vcc", f"v_cndmask_b32 v{vTD+3}, v{vTD+3}, v{vTD+5}, vcc",
              f"v_lshlrev_b32 v{vTA}, 7, v{vTA}", f"v_add_co_u32 v{vTD+2}, vcc, v{vTD+2}, v{vTA}", f"v_addc_co_u32 v{vTD+3}, vcc, 0, v{vTD+3}, vcc",
              f"global_load_dword v{vTD+1}, v[{vTD+2}:{vTD+3}], off")
        A.label(f"{L}_b")
        body(False, f"{L}_b")
        e(f"s_cmp_lt_u32 s{sC}, 8", f"s_cbranch_scc1 {L}_b")
        e("s_waitcnt lgkmcnt(0)")
        D.stamp(3)
        e(f"v_add_f32 v{vS1}, v{vQ1[0]}, v{vQ1[1]}", f"v_add_f32 v{vS2}, v{vQ2[0]}, v{vQ2[1]}", f"v_mov_b32 v{vT0}, v{vS1}", f"v_mov_b32 v{vT1}, v{vS2}", "s_nop 0",
          f"v_permlane32_swap_b32 v{vT0}, v{vS1}", f"v_permlane32_swap_b32 v{vT1}, v{vS2}", "s_nop 0", f"v_add_f32 v{vMU}, v{vS1}, v{vT0}", f"v_add_f32 v{vMU+1}, v{vS2}, v{vT1}",
          f"v_and_b32 v{vT0}, 31, v{vLANE}", f"s_lshl_b32 s{sTMP}, s{sTB}, 5", f"v_add_u32 v{vT1}, s{sTMP}, v{vT0}", f"v_lshlrev_b32 v{vT1}, 3, v{vT1}", f"v_add_u32 v{vT1}, {LDS_STATS}, v{vT1}",
          f"ds_write_b64 v{vT1}, {vr(vMU,2)} offset:{role*1024}",
          f"v_lshlrev_b32 v{vT0}, 2, v{vT0}", f"s_mul_i32 s{sTMP}, s{sTB}, 640", f"s_add_u32 s{sTMP}, s{sTMP}, {LDS_CS + blk0*128}", f"v_add_u32 v{vT0}, s{sTMP}, v{vT0}")
        for b in range(nb): e(f"ds_write_b32 v{vT0}, v{mCS[b]} offset:{b*128}")
        e("s_waitcnt lgkmcnt(0)", "s_barrier")
        CSR = [16, 32, 224]
        CT = [160, 176, 192]
        e(f"ds_read_b64 {vr(vMU,2)}, v{vT1}", f"ds_read_b64 {vr(vS1+1,2)}, v{vT1} offset:1024",
          f"v_lshrrev_b32 v{vT0}, 5, v{vLANE}", f"v_lshlrev_b32 v{vT0}, 4, v{vT0}", f"v_add_u32 v{vT0}, {LDS_CS + blk0*128}, v{vT0}")
        e("s_waitcnt lgkmcnt(0)")
        e(f"v_add_f32 v{vMU}, v{vMU}, v{vS1+1}", f"v_add_f32 v{vMU+1}, v{vMU+1}, v{vS1+2}")
        for b in range(nb):
            for g in range(4): e(f"ds_read_b128 {vr(CSR[b]+4*g,4)}, v{vT0} offset:{b*128 + g*32}")
            for g in range(4): e(f"ds_read_b128 {vr(CT[b]+4*g,4)}, v{vT0} offset:{640 + b*128 + g*32}")
            if b == 0:
                e(f"v_mul_f32 v{vMU}, {fbits(1/512)}, v{vMU}", f"v_mul_f32 v{vMU+1}, {fbits(1/512)}, v{vMU+1}",
                  f"v_fma_f32 v{vMU+1}, -v{vMU}, v{vMU}, v{vMU+1}", f"v_max_f32 v{vMU+1}, 0, v{vMU+1}", f"v_add_f32 v{vMU+1}, {fbits(1e-5)}, v{vMU+1}",
                  f"v_rsq_f32 v{vR}, v{vMU+1}", f"v_sub_f32 v{vMU}, 0, v{vMU}")
            e("s_waitcnt lgkmcnt(0)")
            for p in range(8): e(f"v_pk_add_f32 {vr(CSR[b]+2*p,2)}, {vr(CSR[b]+2*p,2)}, {vr(CT[b]+2*p,2)}")
            for g in range(4): e(f"ds_read_b128 {vr(CT[b]+4*g,4)}, v{vT0} offset:{2*640 + b*128 + g*32}")
            for g in range(4): e(f"ds_read_b128 {vr(TMP+4*g,4)}, v{vT0} offset:{3*640 + b*128 + g*32}")
            e("s_waitcnt lgkmcnt(0)")
            for p in range(8): e(f"v_pk_add_f32 {vr(CT[b]+2*p,2)}, {vr(CT[b]+2*p,2)}, {vr(TMP+2*p,2)}", f"v_pk_add_f32 {vr(CSR[b]+2*p,2)}, {vr(CSR[b]+2*p,2)}, {vr(CT[b]+2*p,2)}")
        for b in range(nb):
            for p in range(8): e(f"v_pk_fma_f32 {vr(ACC[b]+2*p,2)}, {vr(CSR[b]+2*p,2)}, {vr(vMU,2)}, {vr(ACC[b]+2*p,2)} op_sel_hi:[1,0,1]")
        D.stamp(4)
        laneoff = lambda: [f"v_lshlrev_b32 v{vST}, 4, v{vLANE}"]
        def pack8(acc):
            for p in range(8): e(f"v_cvt_pk_bf16_f32 v{vP+p}, v{acc+2*p}, v{acc+2*p+1}")
        def z1_epi(b, fb_expr_s):
            gelu_block(A, ACC[b], TMP, vR, sC3, vC1)
            pack8(ACC[b])
            e(f"s_mul_i32 s{sTMP}, s{sTBG}, 28", f"s_add_u32 s{sTMP}, s{sTMP}, s{fb_expr_s}", f"s_lshl_b32 s{sTMP}, s{sTMP}, 11", f"s_add_u32 s{sTMP}, s{sTMP}, {WS_Z1}")
            e(laneoff())
            e(f"buffer_store_dwordx4 {vr(vP,4)}, v{vST}, s[{SRD_WS}:{SRD_WS+3}], s{sTMP} offen{SC}", f"buffer_store_dwordx4 {vr(vP+4,4)}, v{vST}, s[{SRD_WS}:{SRD_WS+3}], s{sTMP} offen offset:1024{SC}")
        if role == 0:
            b = 2
            e(f"v_mul_f32 v{vR+1}, {fbits(QSCALE)}, v{vR}")
            for p in range(8): e(f"v_pk_mul_f32 {vr(ACC[b]+2*p,2)}, {vr(ACC[b]+2*p,2)}, {vr(vR,2)} op_sel:[0,1] op_sel_hi:[1,1]")
            pack8(ACC[b])
            e(f"s_lshl_b32 s{sTMP}, s{sTBG}, 5", f"s_lshl_b32 s{sTMP+1}, s{sJ}, 1", f"s_add_u32 s{sTMP}, s{sTMP}, s{sTMP+1}", f"s_lshl_b32 s{sTMP}, s{sTMP}, 10", f"s_add_u32 s{sTMP}, s{sTMP}, {WS_QF}")
            e(laneoff())
            e(f"buffer_store_dwordx4 {vr(vP,4)}, v{vST}, s[{SRD_WS}:{SRD_WS+3}], s{sTMP} offen{SC}", f"buffer_store_dwordx4 {vr(vP+4,4)}, v{vST}, s[{SRD_WS}:{SRD_WS+3}], s{sTMP} offen offset:1024{SC}")
            e(f"s_cmp_lt_u32 s{sJ}, 14", f"s_cbranch_scc0 L_{name}_notz1")
            e(f"s_lshl_b32 s{sTMP+3}, s{sJ}, 1")
            z1_epi(0, sTMP+3)
            e(f"s_add_u32 s{sTMP+3}, s{sTMP+3}, 1")
            z1_epi(1, sTMP+3)
            e(f"s_branch L_{name}_done")
            A.label(f"L_{name}_notz1")
            e(f"s_cmp_eq_u32 s{sJ}, 14", f"s_cbranch_scc0 L_{name}_done")
            b = 0; acc = ACC[0]
            for p in range(8): e(f"v_pk_mul_f32 {vr(acc+2*p,2)}, {vr(acc+2*p,2)}, {vr(vR,2)} op_sel_hi:[1,0]")
            e(f"v_mul_f32 v{vT0}, v{acc}, v{acc}")
            for i in range(1, 8): e(f"v_fma_f32 v{vT0}, v{acc+i}, v{acc+i}, v{vT0}")
            e(f"v_mov_b32 v{vT1}, v{vT0}", "s_nop 1", f"v_permlane32_swap_b32 v{vT1}, v{vT0}", "s_nop 1", f"v_add_f32 v{vT0}, v{vT0}, v{vT1}")
            e(f"v_max3_f32 v{vT1}, abs(v{acc+8}), abs(v{acc+9}), abs(v{acc+10})", f"v_max3_f32 v{vT1}, abs(v{acc+11}), abs(v{acc+12}), v{vT1}",
              f"v_max3_f32 v{vT1}, abs(v{acc+13}), abs(v{acc+14}), v{vT1}", f"v_max_f32 v{vT1}, abs(v{acc+15}), v{vT1}")
            for reg in (vT0, vT1):
                for sh in (8, 4, 2, 1):
                    e("s_nop 1", f"v_max_f32_dpp v{reg}, v{reg}, v{reg} row_ror:{sh} row_mask:0xf bank_mask:0xf")
                e(f"v_mov_b32 v{vAX}, v{reg}", "s_nop 1", f"v_permlane16_swap_b32 v{vAX}, v{reg}", "s_nop 1", f"v_max_f32 v{reg}, v{reg}, v{vAX}",
                  f"v_mov_b32 v{vAX}, v{reg}", "s_nop 1", f"v_permlane32_swap_b32 v{vAX}, v{reg}", "s_nop 1", f"v_max_f32 v{reg}, v{reg}, v{vAX}")
            e(f"s_lshl_b32 s{sTMP}, s{sTBG}, 2", f"s_add_u32 s{sTMP}, s{sTMP}, {WS_NRM}", f"v_mov_b32 v{vST}, 0",
              f"buffer_store_dword v{vT0}, v{vST}, s[{SRD_WS}:{SRD_WS+3}], s{sTMP} offen{SC}", f"buffer_store_dword v{vT1}, v{vST}, s[{SRD_WS}:{SRD_WS+3}], s{sTMP} offen offset:256{SC}")
            pack8(acc)
            e(f"s_lshl_b32 s{sTMP}, s{sTBG}, 10", f"s_add_u32 s{sTMP+1}, s{sTMP}, {WS_KF}")
            e(laneoff())
            e(f"buffer_store_dwordx4 {vr(vP,4)}, v{vST}, s[{SRD_WS}:{SRD_WS+3}], s{sTMP+1} offen{SC}")
            e(f"v_and_b32 v{vT0}, 31, v{vLANE}", f"v_mul_u32_u24 v{vT0}, 40, v{vT0}", f"v_lshrrev_b32 v{vT1}, 5, v{vLANE}", f"v_lshlrev_b32 v{vT1}, 3, v{vT1}",
              f"v_add_u32 v{vT0}, v{vT0}, v{vT1}", f"s_mul_i32 s{sTMP+2}, s{sW}, 2560", f"v_add_u32 v{vT0}, s{sTMP+2}, v{vT0}",
              f"ds_write_b64 v{vT0}, {vr(vP+4,2)}", f"ds_write_b64 v{vT0}, {vr(vP+6,2)} offset:16")
            e(f"v_bfe_u32 v{vT0}, v{vLANE}, 4, 1", f"v_lshlrev_b32 v{vT0}, 4, v{vT0}", f"v_lshrrev_b32 v{vT1}, 5, v{vLANE}", f"v_lshlrev_b32 v{vT1}, 2, v{vT1}", f"v_add_u32 v{vT0}, v{vT0}, v{vT1}",
              f"v_bfe_u32 v{vT1}, v{vLANE}, 2, 2", f"v_add_u32 v{vT0}, v{vT0}, v{vT1}", f"v_mul_u32_u24 v{vT0}, 40, v{vT0}", f"v_and_b32 v{vT1}, 3, v{vLANE}", f"v_lshlrev_b32 v{vT1}, 3, v{vT1}",
              f"v_add_u32 v{vT0}, v{vT0}, v{vT1}", f"v_add_u32 v{vT0}, s{sTMP+2}, v{vT0}",
              "s_waitcnt lgkmcnt(0)",
              f"ds_read_b64_tr_b16 {vr(vTR,2)}, v{vT0}", f"ds_read_b64_tr_b16 {vr(vTR+2,2)}, v{vT0} offset:320")
            e(f"v_bfe_u32 v{vST}, v{vLANE}, 4, 1", f"v_lshlrev_b32 v{vST}, 9, v{vST}", f"v_lshrrev_b32 v{vT1}, 5, v{vLANE}", f"v_lshlrev_b32 v{vT1}, 8, v{vT1}", f"v_add_u32 v{vST}, v{vST}, v{vT1}",
              f"v_and_b32 v{vT1}, 15, v{vLANE}", f"v_lshlrev_b32 v{vT1}, 4, v{vT1}", f"v_add_u32 v{vST}, v{vST}, v{vT1}",
              f"s_add_u32 s{sTMP+1}, s{sTMP}, {WS_VF}", "s_waitcnt lgkmcnt(0)",
              f"buffer_store_dwordx4 {vr(vTR,4)}, v{vST}, s[{SRD_WS}:{SRD_WS+3}], s{sTMP+1} offen{SC}")
            e(f"s_branch L_{name}_done")
        else:
            e(f"s_cmp_lt_u32 s{sJ}, 14", f"s_cbranch_scc0 L_{name}_noz2")
            vZS = 208
            for i in range(4): e(f"v_mov_b32 v{vZS+i}, 0")
            vWR, vRD = vXB[0], vXB[1]
            e(f"v_and_b32 v{vWR}, 31, v{vLANE}", f"v_mul_u32_u24 v{vWR}, 72, v{vWR}", f"v_lshrrev_b32 v{vT1}, 5, v{vLANE}", f"v_lshlrev_b32 v{vT1}, 3, v{vT1}",
              f"v_add_u32 v{vWR}, v{vWR}, v{vT1}", f"s_mul_i32 s{sTMP+2}, s{sW}, 2560", f"v_add_u32 v{vWR}, s{sTMP+2}, v{vWR}")
            e(f"v_lshrrev_b32 v{vRD}, 5, v{vLANE}", f"v_lshlrev_b32 v{vRD}, 3, v{vRD}", f"v_bfe_u32 v{vT1}, v{vLANE}, 2, 2", f"v_add_u32 v{vRD}, v{vRD}, v{vT1}", f"v_mul_u32_u24 v{vRD}, 72, v{vRD}",
              f"v_bfe_u32 v{vT1}, v{vLANE}, 4, 1", f"v_lshlrev_b32 v{vT1}, 5, v{vT1}", f"v_add_u32 v{vRD}, v{vRD}, v{vT1}", f"v_and_b32 v{vT1}, 3, v{vLANE}", f"v_lshlrev_b32 v{vT1}, 3, v{vT1}",
              f"v_add_u32 v{vRD}, v{vRD}, v{vT1}", f"v_add_u32 v{vRD}, s{sTMP+2}, v{vRD}")
            for b in range(2):
                acc = ACC[b]
                gelu_block(A, acc, TMP, vR, sC3, vC1)
                for p in range(8): e(f"v_pk_add_f32 {vr(vZS,2)}, {vr(vZS,2)}, {vr(acc+2*p,2)}", f"v_pk_fma_f32 {vr(vZS+2,2)}, {vr(acc+2*p,2)}, {vr(acc+2*p,2)}, {vr(vZS+2,2)}")
                pack8(acc)
                for g in range(4): e(f"ds_write_b64 v{vWR}, {vr(vP+2*g,2)} offset:{16*g}")
                e("s_waitcnt lgkmcnt(0)")
                for m in range(2):
                    e(f"ds_read_b64_tr_b16 {vr(vTR+4*m,2)}, v{vRD} offset:{m*16*72}", f"ds_read_b64_tr_b16 {vr(vTR+4*m+2,2)}, v{vRD} offset:{m*16*72+4*72}")
                e(f"s_lshl_b32 s{sTMP}, s{sTBG}, 1", f"s_mul_i32 s{sTMP}, s{sTMP}, 28", f"s_lshl_b32 s{sTMP+1}, s{sJ}, 1", f"s_add_u32 s{sTMP}, s{sTMP}, s{sTMP+1}", f"s_add_u32 s{sTMP}, s{sTMP}, {b}",
                  f"s_lshl_b32 s{sTMP}, s{sTMP}, 10", f"s_add_u32 s{sTMP}, s{sTMP}, {WS_Z2R}", f"s_add_u32 s{sTMP+1}, s{sTMP}, {28*1024}")
                e(laneoff())
                e("s_waitcnt lgkmcnt(0)")
                e(f"buffer_store_dwordx4 {vr(vTR,4)}, v{vST}, s[{SRD_WS}:{SRD_WS+3}], s{sTMP} offen{SC}", f"buffer_store_dwordx4 {vr(vTR+4,4)}, v{vST}, s[{SRD_WS}:{SRD_WS+3}], s{sTMP+1} offen{SC}")
                e("s_nop 1")
            e(f"v_add_f32 v{vS1}, v{vZS}, v{vZS+1}", f"v_add_f32 v{vS2}, v{vZS+2}, v{vZS+3}")
            e(f"s_branch L_{name}_st")
            A.label(f"L_{name}_noz2")
            e(f"v_mov_b32 v{vS1}, 0", f"v_mov_b32 v{vS2}, 0")
            e(f"s_mov_b32 s{sTMP+1}, s{sI}", f"s_cmp_eq_u32 s{sJ}, 15", f"s_cbranch_scc1 L_{name}_zf", f"s_cmp_eq_u32 s{sI}, 0", f"s_cbranch_scc0 L_{name}_st", f"s_mov_b32 s{sTMP+1}, 16")
            A.label(f"L_{name}_zf")
            for i in range(4): e(f"v_mov_b32 v{vP+i}, 0")
            e(f"s_lshl_b32 s{sTMP}, s{sTMP+1}, 2", f"s_add_u32 s{sTMP}, s{sTMP}, s{sTB}", f"s_lshl_b32 s{sTMP}, s{sTMP}, 10", f"s_add_u32 s{sTMP}, s{sTMP}, {WS_FLG}")
            e(laneoff())
            e(f"buffer_store_dwordx4 {vr(vP,4)}, v{vST}, s[{SRD_WS}:{SRD_WS+3}], s{sTMP} offen{SC}")
            A.label(f"L_{name}_st")
            for S in (vS1, vS2):
                e(f"v_mov_b32 v{vT1}, v{S}", "s_nop 1", f"v_permlane32_swap_b32 v{vT1}, v{S}", "s_nop 1", f"v_add_f32 v{S}, v{S}, v{vT1}")
            e(f"v_mov_b32 v{vP}, v{vS1}", f"v_mov_b32 v{vP+1}, v{vS2}",
              f"s_lshl_b32 s{sTMP}, s{sTBG}, 4", f"s_add_u32 s{sTMP}, s{sTMP}, s{sJ}", f"s_lshl_b32 s{sTMP}, s{sTMP}, 8", f"s_add_u32 s{sTMP}, s{sTMP}, {WS_ST}",
              f"v_and_b32 v{vST}, 31, v{vLANE}", f"v_lshlrev_b32 v{vST}, 3, v{vST}",
              f"buffer_store_dwordx2 {vr(vP,2)}, v{vST}, s[{SRD_WS}:{SRD_WS+3}], s{sTMP} offen{SC}")
            e(f"s_branch L_{name}_done")

    e(f"s_cmp_eq_u32 s{sROLE}, 0", f"s_cbranch_scc0 L_{name}_Y")
    main(0)
    A.label(f"L_{name}_Y")
    main(1)
    A.label(f"L_{name}_done")
    D.stamp(5)
    e("s_waitcnt vmcnt(0)")
    D.stamp(6)
    if ctx: return
    D.flush(sWS, sW)
    A.label(f"L_{name}_end")
    e("s_endpgm")
    txt = kernel_head(name) + A.text() + KD.format(name=name, vgpr=NV, sgpr=100, acc=NV)
    return txt
```

```python
from asmlib import *

def p3_body(A, D, name, R, prefetch_hook=None):
    e = A.e
    sI, sJ, sW, sWO, sWOUT = R['sI'], R['sJ'], R['sW'], R['sWO'], R['sWOUT']
    SRD_WS, SRD_X, SRD_OUT, sT = R['SRD_WS'], R['SRD_X'], R['SRD_OUT'], R['sT']
    vLANE, vTID = R['vLANE'], R['vTID']
    WSR = f"s[{SRD_WS}:{SRD_WS+3}]"
    sACT, sLB, sKS, sBASE = sT+4, sT+5, sT+6, sT+2
    vT0, vT1, vT2 = 2, 3, 4
    vAO, vWG, vWR = 5, 6, 7
    vWR1 = 72
    ACC = 8
    AF = 76
    WF = 164
    XR = 180
    NST = 11; NSLOT = 10; SLOTB = 2048; WREG = NSLOT*SLOTB
    e(f"v_lshrrev_b32 v{vWG}, 3, v{vLANE}", f"v_lshlrev_b32 v{vWG}, 10, v{vWG}", f"v_bfe_u32 v{vT0}, v{vLANE}, 4, 1", f"v_lshlrev_b32 v{vT0}, 2, v{vT0}", f"v_xor_b32 v{vT0}, v{vT0}, v{vLANE}",
      f"v_and_b32 v{vT0}, 7, v{vT0}", f"v_lshlrev_b32 v{vT0}, 4, v{vT0}", f"v_add_u32 v{vWG}, v{vWG}, v{vT0}", f"s_lshl_b32 s{sT}, s{sJ}, 7", f"v_add_u32 v{vWG}, s{sT}, v{vWG}",
      f"s_mul_i32 s{sLB}, s{sW}, {WREG}", f"s_mul_i32 s{sKS}, s{sW}, {NST}")
    def wdma(st):
        slot = st % NSLOT
        o = [f"s_add_u32 s{sT}, s{sKS}, {st}", f"s_sub_u32 s{sT+1}, s{sT}, 32", f"s_cmp_lt_u32 s{sT}, 32", f"s_cselect_b32 s{sT}, s{sT}, s{sT+1}",
             f"s_cselect_b32 s{sBASE}, s{sWO}, s{sWOUT}", f"s_cselect_b32 s{sBASE+1}, s{sWO+1}, s{sWOUT+1}", f"s_lshl_b32 s{sT}, s{sT}, 14",
             f"s_add_u32 s{sBASE}, s{sBASE}, s{sT}", f"s_addc_u32 s{sBASE+1}, s{sBASE+1}, 0",
             f"s_add_u32 m0, s{sLB}, {slot*SLOTB}", "s_nop 0", f"global_load_lds_dwordx4 v{vWG}, s[{sBASE}:{sBASE+1}]",
             f"s_add_u32 s{sBASE}, s{sBASE}, 8192", f"s_addc_u32 s{sBASE+1}, s{sBASE+1}, 0",
             f"s_add_u32 m0, s{sLB}, {slot*SLOTB + 1024}", "s_nop 0", f"global_load_lds_dwordx4 v{vWG}, s[{sBASE}:{sBASE+1}]"]
        return o
    if prefetch_hook:
        R['flag']()
        e(f"s_cmp_eq_u32 s{sW}, 0", f"s_cbranch_scc1 L_{name}_nopf")
        for st in range(NSLOT): e(wdma(st))
        e(f"s_cmp_eq_u32 s{sW}, 1", f"s_cbranch_scc0 L_{name}_nopf")
        e(f"s_mov_b32 s{sLB}, 0", f"s_mov_b32 s{sKS}, 0")
        for st in range(NSLOT): e(wdma(st))
        e(f"s_mul_i32 s{sLB}, s{sW}, {WREG}", f"s_mul_i32 s{sKS}, s{sW}, {NST}")
        A.label(f"L_{name}_nopf")
    else:
        for st in range(NSLOT): e(wdma(st))
    e(f"v_lshrrev_b32 v{vWR}, 5, v{vLANE}", f"v_lshlrev_b32 v{vWR}, 2, v{vWR}", f"v_bfe_u32 v{vT0}, v{vLANE}, 2, 2", f"v_add_u32 v{vWR}, v{vWR}, v{vT0}", f"v_lshlrev_b32 v{vWR}, 7, v{vWR}",
      f"v_bfe_u32 v{vT0}, v{vLANE}, 3, 1", f"v_lshlrev_b32 v{vT0}, 6, v{vT0}", f"v_add_u32 v{vWR}, v{vWR}, v{vT0}",
      f"v_bfe_u32 v{vT0}, v{vLANE}, 4, 1", f"v_lshlrev_b32 v{vT0}, 5, v{vT0}", f"v_add_u32 v{vWR}, v{vWR}, v{vT0}", f"v_and_b32 v{vT0}, 3, v{vLANE}", f"v_lshlrev_b32 v{vT0}, 3, v{vT0}",
      f"v_add_u32 v{vWR}, v{vWR}, v{vT0}", f"v_add_u32 v{vWR}, s{sLB}, v{vWR}", f"v_xor_b32 v{vWR1}, 64, v{vWR}")
    e(f"v_lshrrev_b32 v{vT0}, 3, v{vTID}", f"s_lshl_b32 s{sT}, s{sI}, 6", f"v_add_u32 v{vT0}, s{sT}, v{vT0}", f"v_lshlrev_b32 v{vT0}, 10, v{vT0}", f"v_and_b32 v{vT1}, 7, v{vTID}", f"v_lshlrev_b32 v{vT1}, 4, v{vT1}",
      f"v_add_u32 v{vT0}, v{vT0}, v{vT1}", f"s_lshl_b32 s{sT}, s{sJ}, 7", f"v_add_u32 v{vT2}, s{sT}, v{vT0}")
    e(f"buffer_load_dwordx4 {vr(XR,4)}, v{vT2}, s[{SRD_X}:{SRD_X+3}], 0 offen")
    for i in range(64): e(f"v_mov_b32 v{ACC+i}, 0")
    e(f"s_lshl_b32 s{sT}, s{sI}, 1", f"s_mul_i32 s{sT}, s{sT}, 88", f"s_add_u32 s{sT}, s{sT}, s{sKS}", f"s_lshl_b32 s{sT}, s{sT}, 10", f"s_add_u32 s{sACT}, s{sT}, {WS_ACT}",
      f"v_lshlrev_b32 v{vAO}, 4, v{vLANE}")
    D.stamp(R.get('st0', 1))
    if prefetch_hook: prefetch_hook()
    sc = " sc1" if prefetch_hook else ""
    for st in range(NST):
        e(f"s_add_u32 s{sT}, s{sACT}, {st*1024}", f"buffer_load_dwordx4 {vr(AF + 8*st, 4)}, v{vAO}, {WSR}, s{sT} offen{sc}",
          f"s_add_u32 s{sT}, s{sT}, {88*1024}", f"buffer_load_dwordx4 {vr(AF + 8*st + 4, 4)}, v{vAO}, {WSR}, s{sT} offen{sc}")
    def wreads(st, buf):
        slot = st % NSLOT
        return [f"ds_read_b64_tr_b16 {vr(WF + 8*buf + 4*nb + 2*hf, 2)}, v{vWR if nb == 0 else vWR1} offset:{slot*SLOTB + hf*1024}" for nb in range(2) for hf in range(2)]
    e(f"s_waitcnt vmcnt({2*(NST-1)})", wreads(0, 0))
    ndma = 0
    for st in range(NST):
        buf = st % 2
        if st + 1 < NST:
            nxt = st + 1
            if nxt < NSLOT: e(f"s_waitcnt vmcnt({2*(NST-1-nxt) + ndma})")
            else: e(f"s_waitcnt vmcnt({2*(NST-1-nxt)})")
            e(wreads(nxt, 1-buf), "s_waitcnt lgkmcnt(4)")
        else:
            e("s_waitcnt lgkmcnt(0)")
        for nb in range(2):
            for tb in range(2):
                a_ = ACC + 16*(nb*2+tb)
                e(mfma32(vr(a_,16), vr(WF + 8*buf + 4*nb, 4), vr(AF + 8*st + 4*tb, 4), vr(a_,16)))
        if st + NSLOT < NST:
            e(wdma(st + NSLOT)); ndma += 2
    D.stamp(R.get('st1', R.get('st0', 1) + 1))
    e(nops(12))
    RS = 272; PB = WREG
    e(f"v_and_b32 v{vT0}, 31, v{vLANE}", f"v_mul_u32_u24 v{vT0}, {RS}, v{vT0}", f"v_lshrrev_b32 v{vT1}, 5, v{vLANE}", f"v_lshlrev_b32 v{vT1}, 4, v{vT1}", f"v_add_u32 v{vT0}, v{vT0}, v{vT1}",
      f"v_add_u32 v{vT0}, s{sLB}, v{vT0}")
    for nb in range(2):
        for tb in range(2):
            for g in range(4): e(f"ds_write_b128 v{vT0}, {vr(ACC + 16*(nb*2+tb) + 4*g, 4)} offset:{tb*32*RS + nb*128 + g*32}")
    e(f"v_lshrrev_b32 v{vT0}, 3, v{vTID}", f"v_mul_u32_u24 v{vT0}, {RS}, v{vT0}", f"v_and_b32 v{vT1}, 7, v{vTID}", f"v_lshlrev_b32 v{vT1}, 5, v{vT1}", f"v_add_u32 v{vT0}, v{vT0}, v{vT1}",
      f"v_add_u32 v{vT1}, {3*PB}, v{vT0}", f"v_add_u32 v{vAO}, {6*PB}, v{vT0}")
    e("s_waitcnt lgkmcnt(0)", "s_barrier")
    R0 = AF
    for w in range(8):
        ad = (vT0, vT1, vAO)[w // 3]
        for g in range(2): e(f"ds_read_b128 {vr(R0 + 8*w + 4*g, 4)}, v{ad} offset:{(w % 3)*PB + g*16}")
    e("s_waitcnt lgkmcnt(0) vmcnt(0)")
    for d in (32, 16, 8):
        for p in range(d // 2): e(f"v_pk_add_f32 {vr(R0+2*p,2)}, {vr(R0+2*p,2)}, {vr(R0+d+2*p,2)}")
    for p in range(4):
        xr = XR + p
        e(f"v_lshlrev_b32 v{vT0}, 16, v{xr}", f"v_and_b32 v{vT1}, 0xffff0000, v{xr}", f"v_add_f32 v{vT0}, v{vT0}, v{R0+2*p}", f"v_add_f32 v{vT1}, v{vT1}, v{R0+2*p+1}",
          f"v_cvt_pk_bf16_f32 v{xr}, v{vT0}, v{vT1}")
    e(f"buffer_store_dwordx4 {vr(XR,4)}, v{vT2}, s[{SRD_OUT}:{SRD_OUT+3}], 0 offen")

def gen_p3(name, cfg=None):
    cfg = cfg or {}
    A = Asm(); e = A.e
    D = Diag(A, cfg.get('diag'), 2)
    sX, sWO, sWOUT, sOUT, sWS = 4, 6, 8, 10, 12
    SRD_WS, SRD_X, SRD_OUT = 16, 20, 24
    sI, sJ, sW = 36, 37, 38
    sT = 40
    e("s_cmp_ge_u32 s2, 256", f"s_cbranch_scc1 L_{name}_end")
    e("s_load_dwordx2 s[4:5], s[0:1], 0", "s_load_dwordx2 s[6:7], s[0:1], 32", "s_load_dwordx4 s[8:11], s[0:1], 72", "s_load_dwordx2 s[12:13], s[0:1], 96")
    D.init(); D.stamp(0)
    e(f"v_and_b32 v1, 63, v0", f"v_lshrrev_b32 v2, 6, v0", "s_nop 0", f"v_readfirstlane_b32 s{sW}, v2")
    e(f"s_and_b32 s{sT}, s2, 7", f"s_lshr_b32 s{sT+1}, s2, 3", f"s_and_b32 s{sJ}, s{sT+1}, 7", f"s_lshr_b32 s{sI}, s{sT+1}, 3", f"s_lshl_b32 s{sI}, s{sI}, 3", f"s_add_u32 s{sI}, s{sI}, s{sT}")
    e("s_waitcnt lgkmcnt(0)")
    e(srd(SRD_WS, sWS, WS_END), srd(SRD_X, sX, 2048*1024), srd(SRD_OUT, sOUT, 2048*1024))
    p3_body(A, D, name, dict(sI=sI, sJ=sJ, sW=sW, sWO=sWO, sWOUT=sWOUT, SRD_WS=SRD_WS, SRD_X=SRD_X, SRD_OUT=SRD_OUT, sT=sT, vLANE=1, vTID=0))
    D.stamp(3)
    e("s_waitcnt vmcnt(0)")
    D.stamp(4)
    D.flush(sWS, sW)
    A.label(f"L_{name}_end")
    e("s_endpgm")
    return kernel_head(name) + A.text() + KD.format(name=name, vgpr=192, sgpr=100, acc=192)
```

```python
from asmlib import *
from p1 import gen_p1
from p2 import gen_p2, SPIN_MAX
from p3 import p3_body

def gen_p23(name, cfg=None):
    cfg = cfg or {}
    A = Asm(); e = A.e
    D = Diag(A, cfg.get('diag'), 1)
    ctx = dict(A=A, D=D)
    e("s_cmp_ge_u32 s2, 256", f"s_cbranch_scc1 L_{name}_end")
    D.init()
    D.remap = {0: 0, 2: 6, 3: 7, 4: 8, 6: 9}
    SRD_X, SRD_OUT, sWO, sWOUT = 48, 52, 46, 62
    e(f"s_load_dwordx2 s[{SRD_X}:{SRD_X+1}], s[0:1], 0", f"s_load_dwordx2 s[{SRD_OUT}:{SRD_OUT+1}], s[0:1], 80",
      f"s_load_dwordx2 s[{sWO}:{sWO+1}], s[0:1], 32", f"s_load_dwordx2 s[{sWOUT}:{sWOUT+1}], s[0:1], 72")
    def touchW3(sA, sJ, sT, vLANE, t1, t2):
        for k in range(6):
            e(f"s_mul_i32 s{sT}, s{sA}, 352", f"s_add_u32 s{sT}, s{sT}, {min(k*64, 352-64)}", f"v_add_u32 v{t1}, s{sT}, v{vLANE}",
              f"v_cmp_gt_u32 vcc, 512, v{t1}", f"v_mov_b32 v{t2}, s{sWOUT}", f"v_mov_b32 v{TW}, s{sWOUT+1}", f"v_mov_b32 v{TW+1}, s{sWO}", f"v_mov_b32 v{TW+2}, s{sWO+1}",
              f"v_cndmask_b32 v{t2}, v{t2}, v{TW+1}, vcc", f"v_cndmask_b32 v{TW}, v{TW}, v{TW+2}, vcc", f"v_subrev_u32 v{TW+1}, 512, v{t1}", f"v_cndmask_b32 v{t1}, v{TW+1}, v{t1}, vcc",
              f"v_lshlrev_b32 v{t1}, 10, v{t1}", f"s_lshl_b32 s{sT}, s{sJ}, 7", f"v_add_u32 v{t1}, s{sT}, v{t1}",
              f"v_add_co_u32 v{TW+4}, vcc, v{t2}, v{t1}", f"v_addc_co_u32 v{TW+5}, vcc, 0, v{TW}, vcc", f"global_load_dword v{TW+6+k}, v[{TW+4}:{TW+5}], off")
    TW = 240
    if not cfg.get('notouch'): ctx['touchW3'] = touchW3
    R2 = gen_p2(name + "_p2", cfg.get('p2'), ctx)
    sI, sJ, sW, SRD_WS, sT = R2['sI'], R2['sJ'], R2['sW'], R2['SRD_WS'], R2['sT']
    e("s_setprio 0", "s_waitcnt vmcnt(0) lgkmcnt(0)", "s_barrier")
    e(f"s_mov_b32 s{SRD_X+2}, {2048*1024}", f"s_mov_b32 s{SRD_X+3}, 0x00020000", f"s_mov_b32 s{SRD_OUT+2}, {2048*1024}", f"s_mov_b32 s{SRD_OUT+3}, 0x00020000")
    WSR = f"s[{SRD_WS}:{SRD_WS+3}]"
    def flag():
        e(f"s_cmp_eq_u32 s{sW}, 0", f"s_cbranch_scc0 L_{name}_nofl")
        e(f"s_lshl_b32 s{sT}, s{sI}, 10", f"s_lshl_b32 s{sT+1}, s{sJ}, 7", f"s_add_u32 s{sT+1}, s{sT+1}, s{sT}", f"s_add_u32 s{sT+1}, s{sT+1}, {WS_FL3}",
          "v_mov_b32 v2, 0", "v_mov_b32 v3, 1", f"buffer_store_dword v3, v2, {WSR}, s{sT+1} offen sc0 sc1")
        A.label(f"L_{name}_nofl")
    def hook():
        e(f"s_cmp_eq_u32 s{sW}, 0", f"s_cbranch_scc0 L_{name}_p3ok")
        e(f"s_lshl_b32 s{sT}, s{sI}, 10", f"s_add_u32 s{sT}, s{sT}, {WS_FL3}",
          f"v_and_b32 v2, 7, v{R2['vLANE']}", "v_lshlrev_b32 v2, 7, v2", f"s_mov_b32 s{sT+2}, {SPIN_MAX}")
        A.label(f"L_{name}_p3p")
        e(f"buffer_load_dword v3, v2, {WSR}, s{sT} offen sc0 sc1", "s_waitcnt vmcnt(0)", "v_cmp_ne_u32 vcc, 1, v3", f"s_sub_u32 s{sT+2}, s{sT+2}, 1",
          f"s_cbranch_vccz L_{name}_p3ok", f"s_cmp_eq_u32 s{sT+2}, 0", f"s_cbranch_scc1 L_{name}_p3ok", "s_sleep 1", f"s_branch L_{name}_p3p")
        A.label(f"L_{name}_p3ok")
        e("s_waitcnt vmcnt(0)", "s_barrier")
        D.stamp(2)
    D.remap = {1: 10, 2: 11, 5: 12}
    p3_body(A, D, name + "_p3", dict(sI=sI, sJ=sJ, sW=sW, sWO=sWO, sWOUT=sWOUT, SRD_WS=SRD_WS, SRD_X=SRD_X, SRD_OUT=SRD_OUT, sT=sT, vLANE=R2['vLANE'], vTID=0, st0=1, st1=5, flag=flag), hook)
    D.remap = None
    D.stamp(13)
    e("s_waitcnt vmcnt(0)")
    D.stamp(14)
    D.flush(4, sW)
    A.label(f"L_{name}_end")
    e("s_endpgm")
    return kernel_head(name) + A.text() + KD.format(name=name, vgpr=256, sgpr=100, acc=256)

def mega_asm(cfg=None):
    cfg = cfg or {}
    d = cfg.get('diag')
    s = "; generated by gen/mega.py : two launches (projections | attention + spatial gating + output projection)\n"
    s += "; @launch kernel=p1_kernel grid=(256,1,1) block=(512,1,1) lds=153600\n"
    s += "; @launch kernel=p23_kernel grid=(256,1,1) block=(512,1,1) lds=163840\n"
    s += '.amdgcn_target "amdgcn-amd-amdhsa--gfx950"\n'
    s += gen_p1('p1_kernel', dict(cfg.get('p1') or {}, diag=d)) + gen_p23('p23_kernel', cfg)
    return s
if __name__ == '__main__':
    import sys
    out = sys.argv[1] if len(sys.argv) > 1 else 'parallel_sum__grouped_kv_mqa__mixer_gmlp__prompt.s'
    open(out, 'w').write(mega_asm())
    print('written', out)
```

```python
from asmlib import *

SLOT = 36864
LDS_STATS = 147456
LDS_CS = LDS_STATS + 2048
C1 = -2.0 * 1.4426950408889634 * 0.7978845608028654
C3 = C1 * 0.044715
QSCALE = 0.25 * 1.4426950408889634

import struct
def fbits(x): return "0x%08x" % struct.unpack("<I", struct.pack("<f", x))[0]

def gelu_block(A, acc, T, vr_r, sC3, vC1):
    P = range(8)
    for p in P: A.e(f"v_pk_mul_f32 {vr(acc+2*p,2)}, {vr(acc+2*p,2)}, {vr(vr_r,2)} op_sel_hi:[1,0]")
    for p in P: A.e(f"v_pk_mul_f32 {vr(T+2*p,2)}, {vr(acc+2*p,2)}, {vr(acc+2*p,2)}")
    for p in P: A.e(f"v_pk_fma_f32 {vr(T+2*p,2)}, {vr(T+2*p,2)}, {sr(sC3,2)}, {vr(vC1,2)}")
    for p in P: A.e(f"v_pk_mul_f32 {vr(T+2*p,2)}, {vr(T+2*p,2)}, {vr(acc+2*p,2)}")
    for i in range(16): A.e(f"v_exp_f32 v{T+i}, v{T+i}")
    for p in P: A.e(f"v_pk_add_f32 {vr(T+2*p,2)}, {vr(T+2*p,2)}, 1.0 op_sel_hi:[1,0]")
    for i in range(16): A.e(f"v_rcp_f32 v{T+i}, v{T+i}")
    for p in P: A.e(f"v_pk_mul_f32 {vr(acc+2*p,2)}, {vr(acc+2*p,2)}, {vr(T+2*p,2)}")

def gen_p1(name, cfg=None, ctx=None):
    cfg = cfg or {}
    A = ctx['A'] if ctx else Asm(); e = A.e
    D = ctx['D'] if ctx else Diag(A, cfg.get('diag'), 0)
    SC = " sc0 sc1" if ctx else cfg.get('sc', " sc1")
    sX, sWQ, sWK, sWV, sWIN, sWS = 4, 6, 8, 10, 12, 14
    SRD_X, SRD_WS = 16, 20
    sI, sJ, sW, sTB, sROLE = 24, 25, 26, 27, 28
    sTMP = 29
    sC, sCUR, sNXT, sXOFF, sDST = 36, 37, 38, 39, 40
    sSTEP = 41
    sC3 = 44
    sTBG = 46
    sONES = 47
    sB = 48
    vLANE = 1
    vXO = [2, 3]
    vXB = [4, 5, 6, 7]
    vWB = [8, 9, 10, 11]
    vAX = 12; vAW = [13, 53, 13, 53]; vAW1 = 48; vAWQ = 49
    vQB = [128+2, 128+3, 140+1, 140+2]
    vT0, vT1 = 14, 15
    XF = [16, 20, 224, 228]
    WF = [[24 + 4*b for b in range(3)], [36 + 4*b for b in range(3)], [232 + 4*b for b in range(3)], [244 + 4*b for b in range(3)]]
    vCS = [48, 49, 50]
    vS1, vS2 = 51, 52
    mCS = [160, 176, 192]
    vQ1 = [208, 209]
    vQ2 = [210, 211]
    vU = [212, 213, 214, 215, 216, 217, 218, 219]
    vONE = 220
    vG = [54, 56, 58]
    vR = 60
    vMU = 62
    ACC = [64, 80, 96]
    TMP = 112
    vC1 = 128
    vCORB = 132
    vCORA = 136
    vST = 140
    vP = 144
    vTR = 152
    NV = 256

    if not ctx: e("s_cmp_ge_u32 s2, 256", f"s_cbranch_scc1 L_{name}_end")
    e(f"s_load_dwordx4 s[4:7], s[0:1], 0", f"s_load_dwordx4 s[8:11], s[0:1], 16", f"s_load_dwordx2 s[12:13], s[0:1], 48", f"s_load_dwordx2 s[14:15], s[0:1], 96")
    if not ctx: D.init()
    D.stamp(0)
    e(f"v_and_b32 v{vLANE}, 63, v0", f"v_lshrrev_b32 v{vT0}, 6, v0", "s_nop 0", f"v_readfirstlane_b32 s{sW}, v{vT0}")
    e(f"s_and_b32 s{sTMP}, s2, 7", f"s_lshr_b32 s{sTMP+1}, s2, 3",
      f"s_lshr_b32 s{sI}, s{sTMP}, 1", f"s_lshl_b32 s{sI}, s{sI}, 2", f"s_lshr_b32 s{sTMP+2}, s{sTMP+1}, 3", f"s_add_u32 s{sI}, s{sI}, s{sTMP+2}",
      f"s_and_b32 s{sJ}, s{sTMP}, 1", f"s_lshl_b32 s{sJ}, s{sJ}, 3", f"s_and_b32 s{sTMP+2}, s{sTMP+1}, 7", f"s_add_u32 s{sJ}, s{sJ}, s{sTMP+2}")
    e(f"s_and_b32 s{sTB}, s{sW}, 3", f"s_lshr_b32 s{sROLE}, s{sW}, 2")
    e(f"s_lshl_b32 s{sTBG}, s{sI}, 2", f"s_add_u32 s{sTBG}, s{sTBG}, s{sTB}")
    e(f"s_mov_b32 s{sONES}, 0x3f803f80", f"s_mov_b32 s{sC3}, {fbits(C3)}", f"s_mov_b32 s{sC3+1}, {fbits(C3)}")
    e(f"v_mov_b32 v{vC1}, {fbits(C1)}", f"v_mov_b32 v{vC1+1}, {fbits(C1)}")
    e(f"s_lshl_b32 s{sTMP}, s{sI}, 7", f"s_lshl_b32 s{sTMP+1}, s{sW}, 4", f"s_add_u32 s{sTMP}, s{sTMP}, s{sTMP+1}", f"s_lshl_b32 s{sTMP}, s{sTMP}, 10")
    for q in range(2):
        e(f"v_lshrrev_b32 v{vT0}, 4, v{vLANE}")
        if q: e(f"v_add_u32 v{vT0}, 4, v{vT0}")
        e(f"v_xor_b32 v{vT0}, v{vT0}, v{vLANE}", f"v_and_b32 v{vT0}, 7, v{vT0}", f"v_lshlrev_b32 v{vT0}, 4, v{vT0}",
          f"v_lshrrev_b32 v{vT1}, 3, v{vLANE}", f"v_lshlrev_b32 v{vT1}, 10, v{vT1}", f"v_add_u32 v{vT0}, v{vT0}, v{vT1}",
          f"v_add_u32 v{vXO[q]}, s{sTMP}, v{vT0}")
        if q: e(f"v_add_u32 v{vXO[q]}, 0x2000, v{vXO[q]}")
    e(f"v_and_b32 v{vT0}, 31, v{vLANE}", f"v_lshrrev_b32 v{vT1}, 1, v{vT0}", f"v_and_b32 v{vT1}, 7, v{vT1}",
      f"v_lshrrev_b32 v{vAX}, 5, v{vLANE}", f"v_xor_b32 v{vT1}, v{vT1}, v{vAX}", f"v_lshlrev_b32 v{vT1}, 4, v{vT1}",
      f"v_lshlrev_b32 v{vT0}, 7, v{vT0}", f"v_add_u32 v{vT0}, v{vT0}, v{vT1}", f"s_lshl_b32 s{sTMP}, s{sTB}, 12", f"v_add_u32 v{vT0}, s{sTMP}, v{vT0}")
    e(f"v_lshrrev_b32 v{vT1}, 5, v{vLANE}", f"v_lshlrev_b32 v{vT1}, 3, v{vT1}", f"v_bfe_u32 v{vAW[0]}, v{vLANE}, 2, 2", f"v_add_u32 v{vT1}, v{vT1}, v{vAW[0]}",
      f"v_bfe_u32 v{vAW1}, v{vLANE}, 4, 1", f"v_lshlrev_b32 v{vAW1}, 5, v{vAW1}", f"v_and_b32 v{vAWQ}, 3, v{vLANE}", f"v_lshlrev_b32 v{vAWQ}, 3, v{vAWQ}", f"v_add_u32 v{vAW1}, v{vAW1}, v{vAWQ}",
      f"v_lshlrev_b32 v{vAWQ}, 6, v{vT1}", f"v_add_u32 v{vAWQ}, v{vAWQ}, v{vAW1}",
      f"v_lshlrev_b32 v{vT1}, 7, v{vT1}", f"v_add_u32 v{vT1}, v{vT1}, v{vAW1}", f"v_bfe_u32 v{vAW1}, v{vLANE}, 3, 1", f"v_lshlrev_b32 v{vAW1}, 6, v{vAW1}", f"v_add_u32 v{vT1}, v{vT1}, v{vAW1}")
    for sp in range(4):
        e(f"s_add_u32 s{sTMP}, s{sTB}, {sp}", f"s_and_b32 s{sTMP}, s{sTMP}, 3", f"s_lshl_b32 s{sTMP+1}, s{sTMP}, 5", f"s_lshl_b32 s{sTMP+2}, s{sTMP}, 11", f"s_lshl_b32 s{sTMP+3}, s{sTMP}, 10",
          f"v_xor_b32 v{vXB[sp]}, s{sTMP+1}, v{vT0}", f"v_add_u32 v{vWB[sp]}, s{sTMP+2}, v{vT1}", f"v_add_u32 v{vQB[sp]}, s{sTMP+3}, v{vAWQ}")
    e("s_waitcnt lgkmcnt(0)")
    e(srd(SRD_X, sX, 2048*1024), srd(SRD_WS, sWS, WS_END))
    vROW, vPC = vXB[0] + 0, vXB[1] + 0
    vROW, vPC = TMP, TMP + 1
    e(f"v_lshrrev_b32 v{vROW}, 3, v{vLANE}", f"s_lshl_b32 s{sTMP}, s{sTB}, 4", f"v_add_u32 v{vROW}, s{sTMP}, v{vROW}",
      f"v_bfe_u32 v{vPC}, v{vLANE}, 4, 1", f"v_lshlrev_b32 v{vPC}, 2, v{vPC}", f"v_xor_b32 v{vPC}, v{vPC}, v{vLANE}", f"v_and_b32 v{vPC}, 7, v{vPC}", f"v_lshlrev_b32 v{vPC}, 4, v{vPC}")
    def pair_addr(ptr, coloff_s, stride):
        e(f"s_add_u32 s{sB}, s{ptr}, s{coloff_s}", f"s_addc_u32 s{sB+1}, s{ptr+1}, 0", f"s_mov_b32 s{sB+2}, {stride}",
          f"v_mul_lo_u32 v{vAX}, v{vROW}, s{sB+2}", f"v_add_u32 v{vAX}, v{vAX}, v{vPC}",
          f"v_mov_b32 v{vG[0]+1}, s{sB+1}", f"v_add_co_u32 v{vG[0]}, vcc, s{sB}, v{vAX}", f"v_addc_co_u32 v{vG[0]+1}, vcc, 0, v{vG[0]+1}, vcc",
          f"v_add_co_u32 v{vG[1]}, vcc, {8*stride}, v{vG[0]}", f"v_addc_co_u32 v{vG[1]+1}, vcc, 0, v{vG[0]+1}, vcc",
          f"s_mov_b32 s{sSTEP}, {64*stride}", f"s_mov_b32 s{sSTEP+1}, {64*stride}")
    e(f"s_cmp_eq_u32 s{sROLE}, 0", f"s_cbranch_scc0 L_{name}_addrY")
    e(f"s_cmp_lt_u32 s{sJ}, 14", f"s_cselect_b32 s{sTMP}, s{sJ}, 0", f"s_lshl_b32 s{sTMP}, s{sTMP}, 7")
    pair_addr(sWIN, sTMP, 3584)
    e(f"v_lshrrev_b32 v{vT0}, 2, v{vLANE}", f"s_lshl_b32 s{sTMP}, s{sTB}, 4", f"v_add_u32 v{vT0}, s{sTMP}, v{vT0}", f"v_and_b32 v{vT1}, 3, v{vLANE}", f"v_lshlrev_b32 v{vT1}, 4, v{vT1}",
      f"s_lshl_b32 s{sTMP}, s{sJ}, 6", f"s_add_u32 s{sB}, s{sWQ}, s{sTMP}", f"s_addc_u32 s{sB+1}, s{sWQ+1}, 0",
      f"v_lshlrev_b32 v{vAX}, 10, v{vT0}", f"v_add_u32 v{vAX}, v{vAX}, v{vT1}",
      f"v_mov_b32 v{vG[2]+1}, s{sB+1}", f"v_add_co_u32 v{vG[2]}, vcc, s{sB}, v{vAX}", f"v_addc_co_u32 v{vG[2]+1}, vcc, 0, v{vG[2]+1}, vcc", f"s_mov_b32 s{sSTEP+2}, {64*1024}")
    e(f"s_cmp_eq_u32 s{sJ}, 14", f"s_cbranch_scc0 L_{name}_addrDone")
    e(f"v_lshlrev_b32 v{vAX}, 5, v{vROW}", f"v_and_b32 v{vT0}, 16, v{vPC}", f"v_add_u32 v{vAX}, v{vAX}, v{vT0}",
      f"v_and_b32 v{vT0}, 0x60, v{vPC}", f"v_cmp_eq_u32 vcc, 32, v{vT0}",
      f"v_mov_b32 v{vAW[0]}, s{sWK}", f"v_mov_b32 v{vG[0]+1}, s{sWK+1}", f"v_mov_b32 v{vG[0]}, s{sWV}", f"v_mov_b32 v{vT1}, s{sWV+1}",
      f"v_cndmask_b32 v{vAW[0]}, v{vAW[0]}, v{vG[0]}, vcc", f"v_cndmask_b32 v{vG[0]+1}, v{vG[0]+1}, v{vT1}, vcc",
      f"v_add_co_u32 v{vG[0]}, vcc, v{vAW[0]}, v{vAX}", f"v_addc_co_u32 v{vG[0]+1}, vcc, 0, v{vG[0]+1}, vcc",
      f"v_add_co_u32 v{vG[1]}, vcc, {8*32}, v{vG[0]}", f"v_addc_co_u32 v{vG[1]+1}, vcc, 0, v{vG[0]+1}, vcc",
      f"s_mov_b32 s{sSTEP}, {64*32}", f"s_mov_b32 s{sSTEP+1}, {64*32}")
    e(f"s_branch L_{name}_addrDone")
    A.label(f"L_{name}_addrY")
    e(f"s_cmp_lt_u32 s{sJ}, 14", f"s_cselect_b32 s{sTMP}, s{sJ}, 0", f"s_lshl_b32 s{sTMP}, s{sTMP}, 7", f"s_add_u32 s{sTMP}, s{sTMP}, 1792")
    pair_addr(sWIN, sTMP, 3584)
    e(f"v_mov_b32 v{vG[2]}, v{vG[1]}", f"v_mov_b32 v{vG[2]+1}, v{vG[1]+1}", f"s_mov_b32 s{sSTEP+2}, 0")
    A.label(f"L_{name}_addrDone")

    WOFF = {0: 16384, 1: 16384 + 12288}
    QOFF = 16384 + 8192
    def dma_pieces(nb, blk0, slot_s):
        P = []
        for q in range(2):
            o = []
            if q == 0: o += [f"s_lshl_b32 s{sDST}, s{sW}, 11", f"s_add_u32 s{sDST}, s{sDST}, s{slot_s}"]
            o += [f"s_add_u32 m0, s{sDST}, {q*1024}", "s_nop 0", f"buffer_load_dwordx4 v{vXO[q]}, s[{SRD_X}:{SRD_X+3}], s{sXOFF} offen lds" if not cfg.get('noX') else "s_nop 0"]
            if q == 1: o += [f"s_add_u32 s{sXOFF}, s{sXOFF}, 128"]
            P.append(o)
        role_ = 0 if nb == 3 else 1
        for b in range(nb):
            o = []
            if b == 0: o += [f"s_lshl_b32 s{sDST}, s{sTB}, 11", f"s_add_u32 s{sDST}, s{sDST}, s{slot_s}"]
            if b == 2: o += [f"s_lshl_b32 s{sDST}, s{sTB}, 10", f"s_add_u32 s{sDST}, s{sDST}, s{slot_s}"]
            dst = WOFF[role_] + b*1024 if b < 2 else QOFF
            o += [f"s_add_u32 m0, s{sDST}, {dst}", "s_nop 0", f"global_load_lds_dwordx4 {vr(vG[b],2)}, off" if not cfg.get('noW') else "s_nop 0",
                  f"v_add_co_u32 v{vG[b]}, vcc, s{sSTEP+b}, v{vG[b]}", f"v_addc_co_u32 v{vG[b]+1}, vcc, 0, v{vG[b]+1}, vcc"]
            P.append(o)
        return P
    def dma_chunk(nb, blk0, slot_s):
        return [x for p in dma_pieces(nb, blk0, slot_s) for x in p]
    def read_groups(nb, blk0, sp, buf, slot_s):
        role_ = 0 if nb == 3 else 1
        G = [[f"v_add_u32 v{vAX}, s{slot_s}, v{vXB[sp]}", f"v_add_u32 v{vAW[buf]}, s{slot_s}, v{vWB[sp]}", f"ds_read_b128 {vr(XF[buf],4)}, v{vAX}"]]
        for b in range(nb):
            if b == 0: ad, off, d2 = vAW[buf], WOFF[role_], 512
            elif b == 1: ad, off, d2 = vAW1, WOFF[role_], 512
            else: ad, off, d2 = vAWQ, QOFF, 256
            g = []
            if b == 1: g.append(f"v_xor_b32 v{vAW1}, 64, v{vAW[buf]}")
            if b == 2: g.append(f"v_add_u32 v{vAWQ}, s{slot_s}, v{vQB[sp]}")
            g += [f"ds_read_b64_tr_b16 {vr(WF[buf][b],2)}, v{ad} offset:{off}", f"ds_read_b64_tr_b16 {vr(WF[buf][b]+2,2)}, v{ad} offset:{off+d2}"]
            if b == 0: G[0] += g
            else: G.append(g)
        if cfg.get('noR'): G = [G[0][:2]] + [[] for _ in range(nb-1)]
        if cfg.get('noAddr'):
            G[0] = G[0][2:]
            G = [[x.replace(f", v{vAX}", f", v{vXB[sp]}").replace(f", v{vAW[buf]} ", f", v{vWB[sp]} ") for x in g] for g in G]
        return G

    def main(role):
        nb = 3 if role == 0 else 2
        blk0 = 0 if role == 0 else 3
        n = 2 + nb
        L = f"L_{name}_r{role}"
        e(f"s_mov_b32 s{sXOFF}, 0")
        if cfg.get('prio', (0, 0))[role]: e(f"s_setprio {cfg.get('prio', (0, 0))[role]}")
        for c in range(3):
            e(f"s_mov_b32 s{sTMP}, {c*SLOT}")
            e(dma_chunk(nb, blk0, sTMP))
        D.stamp(1)
        for b in range(nb):
            for i in range(16): e(f"v_mov_b32 v{ACC[b]+i}, 0")
            for i in range(16): e(f"v_mov_b32 v{mCS[b]+i}, 0")
        for i in range(2): e(f"v_mov_b32 v{vQ1[i]}, 0", f"v_mov_b32 v{vQ2[i]}, 0")
        for i in range(4): e(f"v_mov_b32 v{vONE+i}, 0x3f803f80")
        e(f"s_waitcnt vmcnt({2*n})", "s_barrier")
        D.stamp(2)
        e(f"s_mov_b32 s{sC}, 0", f"s_mov_b32 s{sCUR}, 0", f"s_mov_b32 s{sNXT}, {SLOT}")
        e([x for g in read_groups(nb, blk0, 0, 0, sCUR) for x in g])
        e([x for g in read_groups(nb, blk0, 1, 1, sCUR) for x in g])
        m44 = lambda d, a_, b_: f"v_mfma_f32_4x4x4_16b_bf16 {vr(d,4)}, {vr(a_,2)}, {vr(b_,2)}, {vr(d,4)}"
        def body(with_dma, Ln):
            for sp in range(4):
                buf = sp
                pieces = []
                if sp == 2:
                    if with_dma:
                        e(f"s_waitcnt vmcnt({n})", "s_barrier" if not cfg.get('noB') else "s_nop 0",
                          f"s_add_u32 s{sTMP}, s{sC}, 3", f"s_and_b32 s{sTMP}, s{sTMP}, 3", f"s_mul_i32 s{sTMP}, s{sTMP}, {SLOT}")
                    else:
                        nt = 2 if (role == 0 and not cfg.get('notouch')) else 0
                        e(f"s_cmp_eq_u32 s{sC}, 7", f"s_cbranch_scc1 {Ln}_nob", f"s_cmp_eq_u32 s{sC}, 6", f"s_cbranch_scc1 {Ln}_w0",
                          f"s_waitcnt vmcnt({n+nt})", f"s_branch {Ln}_bar", f"{Ln}_w0:", f"s_waitcnt vmcnt({nt})", f"{Ln}_bar:", "s_barrier" if not cfg.get('noB') else "s_nop 0", f"{Ln}_nob:")
                if with_dma and sp >= 2 and not cfg.get('noP'):
                    allp = dma_pieces(nb, blk0, sTMP)
                    h = (len(allp) + 1) // 2
                    pieces = allp[:h] if sp == 2 else allp[h:]
                G = read_groups(nb, blk0, (sp+2) % 4, (sp+2) % 4, sCUR if sp < 2 else sNXT)
                nr = [len([x for x in g if x.startswith('ds_')]) for g in G]
                sq = []
                if not cfg.get('noD'):
                    for i in range(2):
                        xr = XF[buf] + 2*role + i
                        sq.append([f"v_lshlrev_b32 v{vU[2*i]}, 16, v{xr}", f"v_and_b32 v{vU[2*i+1]}, 0xffff0000, v{xr}"])
                    for i in range(2):
                        sq.append([f"v_add_f32 v{vQ1[0]}, v{vQ1[0]}, v{vU[2*i]}", f"v_add_f32 v{vQ1[1]}, v{vQ1[1]}, v{vU[2*i+1]}"])
                        sq.append([f"v_fma_f32 v{vQ2[0]}, v{vU[2*i]}, v{vU[2*i]}, v{vQ2[0]}", f"v_fma_f32 v{vQ2[1]}, v{vU[2*i+1]}, v{vU[2*i+1]}, v{vQ2[1]}"])
                for b in range(nb):
                    pend = sum(nr[b+1:]) + sum(nr) + sum(nr[:b])
                    e(f"s_waitcnt lgkmcnt({pend})")
                    if not cfg.get('noM'): e(mfma32(vr(ACC[b],16), vr(WF[buf][b],4), vr(XF[buf],4), vr(ACC[b],16)))
                    e(G[b])
                    if pieces: e(pieces.pop(0))
                    for _ in range(2 if nb == 3 else 3):
                        if sq: e(sq.pop(0))
                if not cfg.get('noD'):
                    while sq: e(sq.pop(0))
                    if sp == 0 and not cfg.get('noCS'):
                        for b in range(nb): e(mfma32(vr(mCS[b],16), vr(vONE,4), vr(WF[buf][b],4), vr(mCS[b],16)))
                while pieces: e(pieces.pop(0))
            if cfg.get('chunkstamp'):
                for k in range(14, 7, -1): e(f"s_mov_b32 s{65+2*k}, s{65+2*(k-1)}", f"s_mov_b32 s{64+2*k}, 1")
                e("s_memtime s[98:99]", "s_waitcnt lgkmcnt(0)", f"s_mov_b32 s{65+2*7}, s98", f"s_mov_b32 s{64+2*7}, 1")
            e(f"s_add_u32 s{sC}, s{sC}, 1", f"s_mov_b32 s{sCUR}, s{sNXT}", f"s_add_u32 s{sTMP}, s{sC}, 1", f"s_and_b32 s{sTMP}, s{sTMP}, 3", f"s_mul_i32 s{sNXT}, s{sTMP}, {SLOT}")
        A.label(L)
        body(True, L)
        e(f"s_cmp_lt_u32 s{sC}, 5", f"s_cbranch_scc1 {L}")
        if role == 0 and not cfg.get('notouch'):
            vTA, vTD = 132, 134
            e(f"s_load_dwordx2 s[{sB}:{sB+1}], s[0:1], 56", f"s_load_dwordx2 s[{sB+2}:{sB+3}], s[0:1], 32", f"s_load_dwordx2 s[{sB+4}:{sB+5}], s[0:1], 72",
              f"s_lshl_b32 s{sTMP}, s2, 2", f"s_add_u32 s{sTMP}, s{sTMP}, s{sTB}", f"s_lshl_b32 s{sTMP}, s{sTMP}, 13", f"v_lshlrev_b32 v{vTA}, 7, v{vLANE}", f"v_add_u32 v{vTA}, s{sTMP}, v{vTA}",
              "s_waitcnt lgkmcnt(0)", f"global_load_dword v{vTD}, v{vTA}, s[{sB}:{sB+1}]")
            e(f"s_lshl_b32 s{sTMP}, s2, 2", f"s_add_u32 s{sTMP}, s{sTMP}, s{sTB}", f"s_mul_i32 s{sTMP}, s{sTMP}, 11", f"v_min_u32 v{vTA}, 10, v{vLANE}", f"v_add_u32 v{vTA}, s{sTMP}, v{vTA}",
              f"v_cmp_gt_u32 vcc, 4096, v{vTA}", f"v_subrev_u32 v{vTA+1}, 4096, v{vTA}", f"v_mov_b32 v{vTD+2}, s{sB+4}", f"v_mov_b32 v{vTD+3}, s{sB+5}", f"v_mov_b32 v{vTD+4}, s{sB+2}", f"v_mov_b32 v{vTD+5}, s{sB+3}",
              f"v_cndmask_b32 v{vTA}, v{vTA+1}, v{vTA}, vcc", f"v_cndmask_b32 v{vTD+2}, v{vTD+2}, v{vTD+4}, vcc", f"v_cndmask_b32 v{vTD+3}, v{vTD+3}, v{vTD+5}, vcc",
              f"v_lshlrev_b32 v{vTA}, 7, v{vTA}", f"v_add_co_u32 v{vTD+2}, vcc, v{vTD+2}, v{vTA}", f"v_addc_co_u32 v{vTD+3}, vcc, 0, v{vTD+3}, vcc",
              f"global_load_dword v{vTD+1}, v[{vTD+2}:{vTD+3}], off")
        A.label(f"{L}_b")
        body(False, f"{L}_b")
        e(f"s_cmp_lt_u32 s{sC}, 8", f"s_cbranch_scc1 {L}_b")
        e("s_waitcnt lgkmcnt(0)")
        D.stamp(3)
        e(f"v_add_f32 v{vS1}, v{vQ1[0]}, v{vQ1[1]}", f"v_add_f32 v{vS2}, v{vQ2[0]}, v{vQ2[1]}", f"v_mov_b32 v{vT0}, v{vS1}", f"v_mov_b32 v{vT1}, v{vS2}", "s_nop 0",
          f"v_permlane32_swap_b32 v{vT0}, v{vS1}", f"v_permlane32_swap_b32 v{vT1}, v{vS2}", "s_nop 0", f"v_add_f32 v{vMU}, v{vS1}, v{vT0}", f"v_add_f32 v{vMU+1}, v{vS2}, v{vT1}",
          f"v_and_b32 v{vT0}, 31, v{vLANE}", f"s_lshl_b32 s{sTMP}, s{sTB}, 5", f"v_add_u32 v{vT1}, s{sTMP}, v{vT0}", f"v_lshlrev_b32 v{vT1}, 3, v{vT1}", f"v_add_u32 v{vT1}, {LDS_STATS}, v{vT1}",
          f"ds_write_b64 v{vT1}, {vr(vMU,2)} offset:{role*1024}",
          f"v_lshlrev_b32 v{vT0}, 4, v{vT0}", f"v_add_u32 v{vT0}, {LDS_CS + blk0*512}, v{vT0}", f"s_lshl_b32 s{sTMP}, s{sTB}, 2", f"v_add_u32 v{vAX}, s{sTMP}, v{vT0}")
        for b in range(nb): e(f"ds_write_b32 v{vAX}, v{mCS[b]} offset:{b*512}")
        e("s_waitcnt lgkmcnt(0)", "s_barrier")
        CSR = [16, 20, 24]
        vCORB, vCORA = 28, 32
        e(f"ds_read_b64 {vr(vMU,2)}, v{vT1}", f"ds_read_b64 {vr(vS1+1,2)}, v{vT1} offset:1024")
        for b in range(nb): e(f"ds_read_b128 {vr(CSR[b],4)}, v{vT0} offset:{b*512}")
        e(f"v_cmp_gt_u32 vcc, 32, v{vLANE}", f"v_mov_b32 v{vCORB+2}, 0", f"v_mov_b32 v{vCORB+3}, 0")
        for b in range(nb): e(f"v_mov_b32 v{vCORA+4*b+2}, 0", f"v_mov_b32 v{vCORA+4*b+3}, 0")
        e(f"s_waitcnt lgkmcnt({nb})")
        e(f"v_add_f32 v{vMU}, v{vMU}, v{vS1+1}", f"v_add_f32 v{vMU+1}, v{vMU+1}, v{vS1+2}",
          f"v_mul_f32 v{vMU}, {fbits(-1/512)}, v{vMU}", f"v_mul_f32 v{vMU+1}, {fbits(1/512)}, v{vMU+1}",
          f"v_cvt_pk_bf16_f32 v{vCORB}, v{vMU}, v{vMU}", f"v_fma_f32 v{vMU+1}, -v{vMU}, v{vMU}, v{vMU+1}",
          f"v_and_b32 v{vT1}, 0xffff0000, v{vCORB}", f"v_max_f32 v{vMU+1}, 0, v{vMU+1}", f"v_sub_f32 v{vT1}, v{vMU}, v{vT1}", f"v_add_f32 v{vMU+1}, {fbits(1e-5)}, v{vMU+1}",
          f"v_cvt_pk_bf16_f32 v{vCORB+1}, v{vT1}, 0", f"v_rsq_f32 v{vR}, v{vMU+1}",
          f"v_cndmask_b32 v{vCORB}, 0, v{vCORB}, vcc", f"v_cndmask_b32 v{vCORB+1}, 0, v{vCORB+1}, vcc", "s_waitcnt lgkmcnt(0)")
        for b in range(nb): e(f"v_add_f32 v{CSR[b]}, v{CSR[b]}, v{CSR[b]+1}", f"v_add_f32 v{CSR[b]+2}, v{CSR[b]+2}, v{CSR[b]+3}")
        for b in range(nb): e(f"v_add_f32 v{CSR[b]}, v{CSR[b]}, v{CSR[b]+2}")
        for b in range(nb): e(f"v_cvt_pk_bf16_f32 v{vCORA+4*b+1}, v{CSR[b]}, 0")
        for b in range(nb): e(f"v_lshlrev_b32 v{CSR[b]+1}, 16, v{vCORA+4*b+1}")
        for b in range(nb): e(f"v_sub_f32 v{CSR[b]+1}, v{CSR[b]}, v{CSR[b]+1}")
        for b in range(nb): e(f"v_cvt_pk_bf16_f32 v{vCORA+4*b}, v{CSR[b]}, v{CSR[b]+1}")
        for b in range(nb): e(f"v_cndmask_b32 v{vCORA+4*b}, 0, v{vCORA+4*b}, vcc", f"v_cndmask_b32 v{vCORA+4*b+1}, 0, v{vCORA+4*b+1}, vcc")
        e("s_nop 1")
        for b in range(nb): e(mfma32(vr(ACC[b],16), vr(vCORA+4*b,4), vr(vCORB,4), vr(ACC[b],16)))
        e(nops(14))
        D.stamp(4)
        if cfg.get('eprio') and role == 1: e(f"s_setprio {cfg['eprio']}")
        laneoff = lambda: [f"v_lshlrev_b32 v{vST}, 4, v{vLANE}"]
        def pack8(acc):
            for p in range(8): e(f"v_cvt_pk_bf16_f32 v{vP+p}, v{acc+2*p}, v{acc+2*p+1}")
        def z1_epi(b, fb_expr_s):
            gelu_block(A, ACC[b], TMP, vR, sC3, vC1)
            pack8(ACC[b])
            e(f"s_mul_i32 s{sTMP}, s{sTBG}, 28", f"s_add_u32 s{sTMP}, s{sTMP}, s{fb_expr_s}", f"s_lshl_b32 s{sTMP}, s{sTMP}, 11", f"s_add_u32 s{sTMP}, s{sTMP}, {WS_Z1}")
            e(laneoff())
            e(f"buffer_store_dwordx4 {vr(vP,4)}, v{vST}, s[{SRD_WS}:{SRD_WS+3}], s{sTMP} offen{SC}", f"buffer_store_dwordx4 {vr(vP+4,4)}, v{vST}, s[{SRD_WS}:{SRD_WS+3}], s{sTMP} offen offset:1024{SC}")
        if role == 0:
            b = 2
            e(f"v_mul_f32 v{vR+1}, {fbits(QSCALE)}, v{vR}")
            for p in range(8): e(f"v_pk_mul_f32 {vr(ACC[b]+2*p,2)}, {vr(ACC[b]+2*p,2)}, {vr(vR,2)} op_sel:[0,1] op_sel_hi:[1,1]")
            pack8(ACC[b])
            e(f"s_lshl_b32 s{sTMP}, s{sTBG}, 5", f"s_lshl_b32 s{sTMP+1}, s{sJ}, 1", f"s_add_u32 s{sTMP}, s{sTMP}, s{sTMP+1}", f"s_lshl_b32 s{sTMP}, s{sTMP}, 10", f"s_add_u32 s{sTMP}, s{sTMP}, {WS_QF}")
            e(laneoff())
            e(f"buffer_store_dwordx4 {vr(vP,4)}, v{vST}, s[{SRD_WS}:{SRD_WS+3}], s{sTMP} offen{SC}", f"buffer_store_dwordx4 {vr(vP+4,4)}, v{vST}, s[{SRD_WS}:{SRD_WS+3}], s{sTMP} offen offset:1024{SC}")
            e(f"s_cmp_lt_u32 s{sJ}, 14", f"s_cbranch_scc0 L_{name}_notz1")
            e(f"s_lshl_b32 s{sTMP+3}, s{sJ}, 1")
            z1_epi(0, sTMP+3)
            e(f"s_add_u32 s{sTMP+3}, s{sTMP+3}, 1")
            z1_epi(1, sTMP+3)
            e(f"s_branch L_{name}_done")
            A.label(f"L_{name}_notz1")
            e(f"s_cmp_eq_u32 s{sJ}, 14", f"s_cbranch_scc0 L_{name}_done")
            b = 0; acc = ACC[0]
            for p in range(8): e(f"v_pk_mul_f32 {vr(acc+2*p,2)}, {vr(acc+2*p,2)}, {vr(vR,2)} op_sel_hi:[1,0]")
            e(f"v_mul_f32 v{vT0}, v{acc}, v{acc}")
            for i in range(1, 8): e(f"v_fma_f32 v{vT0}, v{acc+i}, v{acc+i}, v{vT0}")
            e(f"v_mov_b32 v{vT1}, v{vT0}", "s_nop 1", f"v_permlane32_swap_b32 v{vT1}, v{vT0}", "s_nop 1", f"v_add_f32 v{vT0}, v{vT0}, v{vT1}")
            e(f"v_max3_f32 v{vT1}, abs(v{acc+8}), abs(v{acc+9}), abs(v{acc+10})", f"v_max3_f32 v{vT1}, abs(v{acc+11}), abs(v{acc+12}), v{vT1}",
              f"v_max3_f32 v{vT1}, abs(v{acc+13}), abs(v{acc+14}), v{vT1}", f"v_max_f32 v{vT1}, abs(v{acc+15}), v{vT1}")
            for reg in (vT0, vT1):
                for sh in (8, 4, 2, 1):
                    e("s_nop 1", f"v_max_f32_dpp v{reg}, v{reg}, v{reg} row_ror:{sh} row_mask:0xf bank_mask:0xf")
                e(f"v_mov_b32 v{vAX}, v{reg}", "s_nop 1", f"v_permlane16_swap_b32 v{vAX}, v{reg}", "s_nop 1", f"v_max_f32 v{reg}, v{reg}, v{vAX}",
                  f"v_mov_b32 v{vAX}, v{reg}", "s_nop 1", f"v_permlane32_swap_b32 v{vAX}, v{reg}", "s_nop 1", f"v_max_f32 v{reg}, v{reg}, v{vAX}")
            e(f"s_lshl_b32 s{sTMP}, s{sTBG}, 2", f"s_add_u32 s{sTMP}, s{sTMP}, {WS_NRM}", f"v_mov_b32 v{vST}, 0",
              f"buffer_store_dword v{vT0}, v{vST}, s[{SRD_WS}:{SRD_WS+3}], s{sTMP} offen{SC}", f"buffer_store_dword v{vT1}, v{vST}, s[{SRD_WS}:{SRD_WS+3}], s{sTMP} offen offset:256{SC}")
            pack8(acc)
            e(f"s_lshl_b32 s{sTMP}, s{sTBG}, 10", f"s_add_u32 s{sTMP+1}, s{sTMP}, {WS_KF}")
            e(laneoff())
            e(f"buffer_store_dwordx4 {vr(vP,4)}, v{vST}, s[{SRD_WS}:{SRD_WS+3}], s{sTMP+1} offen{SC}")
            e(f"v_and_b32 v{vT0}, 31, v{vLANE}", f"v_mul_u32_u24 v{vT0}, 40, v{vT0}", f"v_lshrrev_b32 v{vT1}, 5, v{vLANE}", f"v_lshlrev_b32 v{vT1}, 3, v{vT1}",
              f"v_add_u32 v{vT0}, v{vT0}, v{vT1}", f"s_mul_i32 s{sTMP+2}, s{sW}, 2560", f"v_add_u32 v{vT0}, s{sTMP+2}, v{vT0}",
              f"ds_write_b64 v{vT0}, {vr(vP+4,2)}", f"ds_write_b64 v{vT0}, {vr(vP+6,2)} offset:16")
            e(f"v_bfe_u32 v{vT0}, v{vLANE}, 4, 1", f"v_lshlrev_b32 v{vT0}, 4, v{vT0}", f"v_lshrrev_b32 v{vT1}, 5, v{vLANE}", f"v_lshlrev_b32 v{vT1}, 2, v{vT1}", f"v_add_u32 v{vT0}, v{vT0}, v{vT1}",
              f"v_bfe_u32 v{vT1}, v{vLANE}, 2, 2", f"v_add_u32 v{vT0}, v{vT0}, v{vT1}", f"v_mul_u32_u24 v{vT0}, 40, v{vT0}", f"v_and_b32 v{vT1}, 3, v{vLANE}", f"v_lshlrev_b32 v{vT1}, 3, v{vT1}",
              f"v_add_u32 v{vT0}, v{vT0}, v{vT1}", f"v_add_u32 v{vT0}, s{sTMP+2}, v{vT0}",
              "s_waitcnt lgkmcnt(0)",
              f"ds_read_b64_tr_b16 {vr(vTR,2)}, v{vT0}", f"ds_read_b64_tr_b16 {vr(vTR+2,2)}, v{vT0} offset:320")
            e(f"v_bfe_u32 v{vST}, v{vLANE}, 4, 1", f"v_lshlrev_b32 v{vST}, 9, v{vST}", f"v_lshrrev_b32 v{vT1}, 5, v{vLANE}", f"v_lshlrev_b32 v{vT1}, 8, v{vT1}", f"v_add_u32 v{vST}, v{vST}, v{vT1}",
              f"v_and_b32 v{vT1}, 15, v{vLANE}", f"v_lshlrev_b32 v{vT1}, 4, v{vT1}", f"v_add_u32 v{vST}, v{vST}, v{vT1}",
              f"s_add_u32 s{sTMP+1}, s{sTMP}, {WS_VF}", "s_waitcnt lgkmcnt(0)",
              f"buffer_store_dwordx4 {vr(vTR,4)}, v{vST}, s[{SRD_WS}:{SRD_WS+3}], s{sTMP+1} offen{SC}")
            e(f"s_branch L_{name}_done")
        else:
            e(f"s_cmp_lt_u32 s{sJ}, 14", f"s_cbranch_scc0 L_{name}_noz2")
            vZS = 208
            for i in range(4): e(f"v_mov_b32 v{vZS+i}, 0")
            vWR, vRD = vXB[0], vXB[1]
            e(f"v_and_b32 v{vWR}, 31, v{vLANE}", f"v_mul_u32_u24 v{vWR}, 72, v{vWR}", f"v_lshrrev_b32 v{vT1}, 5, v{vLANE}", f"v_lshlrev_b32 v{vT1}, 3, v{vT1}",
              f"v_add_u32 v{vWR}, v{vWR}, v{vT1}", f"s_mul_i32 s{sTMP+2}, s{sW}, 4608", f"v_add_u32 v{vWR}, s{sTMP+2}, v{vWR}")
            e(f"v_lshrrev_b32 v{vRD}, 5, v{vLANE}", f"v_lshlrev_b32 v{vRD}, 3, v{vRD}", f"v_bfe_u32 v{vT1}, v{vLANE}, 2, 2", f"v_add_u32 v{vRD}, v{vRD}, v{vT1}", f"v_mul_u32_u24 v{vRD}, 72, v{vRD}",
              f"v_bfe_u32 v{vT1}, v{vLANE}, 4, 1", f"v_lshlrev_b32 v{vT1}, 5, v{vT1}", f"v_add_u32 v{vRD}, v{vRD}, v{vT1}", f"v_and_b32 v{vT1}, 3, v{vLANE}", f"v_lshlrev_b32 v{vT1}, 3, v{vT1}",
              f"v_add_u32 v{vRD}, v{vRD}, v{vT1}", f"v_add_u32 v{vRD}, s{sTMP+2}, v{vRD}")
            for b in range(2):
                acc = ACC[b]
                gelu_block(A, acc, TMP, vR, sC3, vC1)
                for p in range(8): e(f"v_pk_add_f32 {vr(vZS,2)}, {vr(vZS,2)}, {vr(acc+2*p,2)}", f"v_pk_fma_f32 {vr(vZS+2,2)}, {vr(acc+2*p,2)}, {vr(acc+2*p,2)}, {vr(vZS+2,2)}")
                for p in range(8): e(f"v_cvt_pk_bf16_f32 v{vP+p}, v{acc+2*p}, v{acc+2*p+1}")
                for g in range(4): e(f"ds_write_b64 v{vWR}, {vr(vP+2*g,2)} offset:{16*g + b*2304}")
                if b == 0: e("s_waitcnt lgkmcnt(0)")
            e("s_waitcnt lgkmcnt(0)")
            TRR = [vTR, 16]
            for b in range(2):
                for m in range(2):
                    e(f"ds_read_b64_tr_b16 {vr(TRR[b]+4*m,2)}, v{vRD} offset:{b*2304 + m*16*72}", f"ds_read_b64_tr_b16 {vr(TRR[b]+4*m+2,2)}, v{vRD} offset:{b*2304 + m*16*72+4*72}")
            e(laneoff())
            for b in range(2):
                e(f"s_lshl_b32 s{sTMP}, s{sTBG}, 1", f"s_mul_i32 s{sTMP}, s{sTMP}, 28", f"s_lshl_b32 s{sTMP+1}, s{sJ}, 1", f"s_add_u32 s{sTMP}, s{sTMP}, s{sTMP+1}", f"s_add_u32 s{sTMP}, s{sTMP}, {b}",
                  f"s_lshl_b32 s{sTMP}, s{sTMP}, 10", f"s_add_u32 s{sTMP}, s{sTMP}, {WS_Z2R}", f"s_add_u32 s{sTMP+1}, s{sTMP}, {28*1024}")
                e(f"s_waitcnt lgkmcnt({4 - 4*b})")
                e(f"buffer_store_dwordx4 {vr(TRR[b],4)}, v{vST}, s[{SRD_WS}:{SRD_WS+3}], s{sTMP} offen{SC}", f"buffer_store_dwordx4 {vr(TRR[b]+4,4)}, v{vST}, s[{SRD_WS}:{SRD_WS+3}], s{sTMP+1} offen{SC}")
            e(f"v_add_f32 v{vS1}, v{vZS}, v{vZS+1}", f"v_add_f32 v{vS2}, v{vZS+2}, v{vZS+3}")
            e(f"s_branch L_{name}_st")
            A.label(f"L_{name}_noz2")
            e(f"v_mov_b32 v{vS1}, 0", f"v_mov_b32 v{vS2}, 0")
            e(f"s_mov_b32 s{sTMP+1}, s{sI}", f"s_cmp_eq_u32 s{sJ}, 15", f"s_cbranch_scc1 L_{name}_zf", f"s_cmp_eq_u32 s{sI}, 0", f"s_cbranch_scc0 L_{name}_st", f"s_mov_b32 s{sTMP+1}, 16")
            A.label(f"L_{name}_zf")
            for i in range(4): e(f"v_mov_b32 v{vP+i}, 0")
            e(f"s_lshl_b32 s{sTMP}, s{sTMP+1}, 2", f"s_add_u32 s{sTMP}, s{sTMP}, s{sTB}", f"s_lshl_b32 s{sTMP}, s{sTMP}, 10", f"s_add_u32 s{sTMP}, s{sTMP}, {WS_FLG}")
            e(laneoff())
            e(f"buffer_store_dwordx4 {vr(vP,4)}, v{vST}, s[{SRD_WS}:{SRD_WS+3}], s{sTMP} offen{SC}")
            A.label(f"L_{name}_st")
            for S in (vS1, vS2):
                e(f"v_mov_b32 v{vT1}, v{S}", "s_nop 1", f"v_permlane32_swap_b32 v{vT1}, v{S}", "s_nop 1", f"v_add_f32 v{S}, v{S}, v{vT1}")
            e(f"v_mov_b32 v{vP}, v{vS1}", f"v_mov_b32 v{vP+1}, v{vS2}",
              f"s_lshl_b32 s{sTMP}, s{sTBG}, 4", f"s_add_u32 s{sTMP}, s{sTMP}, s{sJ}", f"s_lshl_b32 s{sTMP}, s{sTMP}, 8", f"s_add_u32 s{sTMP}, s{sTMP}, {WS_ST}",
              f"v_and_b32 v{vST}, 31, v{vLANE}", f"v_lshlrev_b32 v{vST}, 3, v{vST}",
              f"buffer_store_dwordx2 {vr(vP,2)}, v{vST}, s[{SRD_WS}:{SRD_WS+3}], s{sTMP} offen{SC}")
            e(f"s_branch L_{name}_done")

    e(f"s_cmp_eq_u32 s{sROLE}, 0", f"s_cbranch_scc0 L_{name}_Y")
    main(0)
    A.label(f"L_{name}_Y")
    main(1)
    A.label(f"L_{name}_done")
    D.stamp(5)
    e("s_waitcnt vmcnt(0)")
    D.stamp(6)
    if ctx: return
    D.flush(sWS, sW)
    A.label(f"L_{name}_end")
    e("s_endpgm")
    txt = kernel_head(name) + A.text() + KD.format(name=name, vgpr=NV, sgpr=100, acc=NV)
    return txt
```

```python
from asmlib import *
import struct
def fbits(x): return "0x%08x" % struct.unpack("<I", struct.pack("<f", x))[0]

LDS_V = 65536
LDS_BOUNCE = 131072
SPIN_MAX = 1 << 20
XFLAG = 48*1024
XMAGIC = 0x7fc17fc1
XREG = [0, 24576, 65536, 65536 + 24576]

def gen_p23(name, cfg=None):
    cfg = cfg or {}
    A = Asm(); e = A.e
    D = Diag(A, cfg.get('diag'), 1)
    SRD_WS, SRD_WSP, SRD_BSP, SRD_X, SRD_OUT = 12, 16, 20, 48, 52
    SRD_WO, SRD_WOUT = 56, 60
    sI, sJ, sW, sA = 24, 25, 26, 27
    sT = 28
    sCNT, sTBG, sQO = 36, 37, 38
    sLB = 39; sEX = 40; sZ, sWOF, sT2 = 42, 43, 44
    WSR = f"s[{SRD_WS}:{SRD_WS+3}]"
    vLANE = 1; vT0, vT1, vT2, vT3 = 2, 3, 4, 5
    SC = cfg.get('sc', " sc0 sc1")
    FSC = cfg.get('fsc', " sc0 sc1")
    PSC = cfg.get('psc', " sc0 sc1")
    SLEEP = cfg.get('sleep', 1)
    e("s_cmp_ge_u32 s2, 256", f"s_cbranch_scc1 L_{name}_end")
    D.init()
    e("s_load_dwordx2 s[4:5], s[0:1], 96", "s_load_dwordx4 s[8:11], s[0:1], 56",
      f"s_load_dwordx2 s[{SRD_X}:{SRD_X+1}], s[0:1], 0", f"s_load_dwordx2 s[{SRD_OUT}:{SRD_OUT+1}], s[0:1], 80",
      f"s_load_dwordx2 s[{SRD_WO}:{SRD_WO+1}], s[0:1], 32", f"s_load_dwordx2 s[{SRD_WOUT}:{SRD_WOUT+1}], s[0:1], 72")
    D.stamp(0)
    e(f"v_and_b32 v{vLANE}, 63, v0", f"v_lshrrev_b32 v{vT0}, 6, v0", "s_nop 0", f"v_readfirstlane_b32 s{sW}, v{vT0}")
    e(f"s_and_b32 s{sT}, s2, 7", f"s_lshr_b32 s{sT+1}, s2, 3", f"s_and_b32 s{sJ}, s{sT+1}, 7", f"s_lshr_b32 s{sI}, s{sT+1}, 3", f"s_lshl_b32 s{sI}, s{sI}, 3", f"s_add_u32 s{sI}, s{sI}, s{sT}")
    e(f"s_and_b32 s{sA}, s{sW}, 3", f"s_mov_b32 s{sEX}, 0x0000ffff", f"s_mov_b32 s{sEX+1}, 0x0000ffff")
    e("s_waitcnt lgkmcnt(0)")
    e(srd(SRD_WS, 4, WS_END), srd(SRD_WSP, 8, 2048*4096), srd(SRD_BSP, 10, 4096))
    e(f"s_mov_b32 s{SRD_X+2}, {2048*1024}", f"s_mov_b32 s{SRD_X+3}, 0x00020000", f"s_mov_b32 s{SRD_OUT+2}, {2048*1024}", f"s_mov_b32 s{SRD_OUT+3}, 0x00020000",
      f"s_mov_b32 s{SRD_WO+2}, {512*1024}", f"s_mov_b32 s{SRD_WO+3}, 0x00020000", f"s_mov_b32 s{SRD_WOUT+2}, {896*1024}", f"s_mov_b32 s{SRD_WOUT+3}, 0x00020000")
    def kv_fill(phase):
        e(f"v_lshlrev_b32 v{vT0}, 4, v{vLANE}", f"s_lshr_b32 s{sT}, s{sA}, 1", f"s_lshl_b32 s{sT}, s{sT}, 16", f"s_and_b32 s{sT+1}, s{sA}, 1")
        if phase == 0:
            e(f"s_lshl_b32 s{sT+1}, s{sT+1}, 13", f"s_add_u32 s{sT}, s{sT}, s{sT+1}"); cnt = 8
        else:
            e(f"s_mul_i32 s{sT+1}, s{sT+1}, 24576", f"s_add_u32 s{sT}, s{sT}, s{sT+1}", f"s_add_u32 s{sT}, s{sT}, 16384"); cnt = 24
        e(f"s_add_u32 s{sT+1}, s{sT}, {WS_KF}")
        for n in range(cnt):
            e(f"s_add_u32 m0, s{sT}, {n*1024}", f"s_add_u32 s{sT+2}, s{sT+1}, {n*1024}", f"buffer_load_dwordx4 v{vT0}, {WSR}, s{sT+2} offen lds")
    def set_flag(base, lab):
        e(f"s_lshl_b32 s{sT}, s{sI}, 10", f"s_lshl_b32 s{sT+1}, s{sJ}, 7", f"s_add_u32 s{sT}, s{sT}, s{sT+1}", f"s_lshl_b32 s{sT+1}, s{sA}, 2", f"s_add_u32 s{sT}, s{sT}, s{sT+1}",
          f"s_add_u32 s{sT}, s{sT}, {base}", f"v_mov_b32 v{vT0}, 0", f"v_mov_b32 v{vT1}, 1", f"buffer_store_dword v{vT1}, v{vT0}, {WSR}, s{sT} offen{FSC}")
    def poll(off_s, vaddr, lab):
        e(f"s_mov_b32 s{sCNT}, {SPIN_MAX}")
        A.label(f"L_{name}_{lab}")
        e(f"buffer_load_dword v{vT1}, v{vaddr}, {WSR}, s{off_s} offen{PSC}", "s_waitcnt vmcnt(0)", f"v_cmp_ne_u32 vcc, 1, v{vT1}", f"s_sub_u32 s{sCNT}, s{sCNT}, 1",
          f"s_cbranch_vccz L_{name}_{lab}ok", f"s_cmp_eq_u32 s{sCNT}, 0", f"s_cbranch_scc1 L_{name}_{lab}ok", f"s_sleep {SLEEP}" if SLEEP else "s_nop 0", f"s_branch L_{name}_{lab}")
        A.label(f"L_{name}_{lab}ok")
    XR = 220
    vOUT = 224
    def residual_load():
        e(f"v_lshrrev_b32 v{vT0}, 3, v0", f"s_lshl_b32 s{sT}, s{sI}, 6", f"v_add_u32 v{vT0}, s{sT}, v{vT0}", f"v_lshlrev_b32 v{vT0}, 10, v{vT0}", f"v_and_b32 v{vT1}, 7, v0", f"v_lshlrev_b32 v{vT1}, 4, v{vT1}",
          f"v_add_u32 v{vT0}, v{vT0}, v{vT1}", f"s_lshl_b32 s{sT}, s{sJ}, 7", f"v_add_u32 v{vOUT}, s{sT}, v{vT0}",
          f"buffer_load_dwordx4 {vr(XR,4)}, v{vOUT}, s[{SRD_X}:{SRD_X+3}], 0 offen")
    e(f"s_cmp_ge_u32 s{sW}, 4", f"s_cbranch_scc1 L_{name}_B")

    Q = [8, 12]; O = [16, 32]; S = [48, 64]; K = [80, 84]; V = [88, 96]
    vKA, vVA = 6, 7
    vM = [104, 105]
    vX = 108
    e(f"s_and_b32 s{sT}, s{sA}, 1", f"s_lshl_b32 s{sTBG}, s{sI}, 1", f"s_add_u32 s{sTBG}, s{sTBG}, s{sT}")
    kv_fill(0)
    e(f"s_lshl_b32 s{sT}, s{sTBG}, 5", f"s_lshl_b32 s{sT+1}, s{sJ}, 2", f"s_add_u32 s{sT}, s{sT}, s{sT+1}", f"s_and_b32 s{sT+1}, s{sA}, 2", f"s_add_u32 s{sT}, s{sT}, s{sT+1}",
      f"s_lshl_b32 s{sT}, s{sT}, 10", f"s_add_u32 s{sT}, s{sT}, {WS_QF}", f"v_lshlrev_b32 v{vT0}, 4, v{vLANE}")
    for q in range(2): e(f"buffer_load_dwordx4 {vr(Q[q],4)}, v{vT0}, {WSR}, s{sT} offen offset:{q*1024}")
    e(f"v_lshlrev_b32 v{vT1}, 2, v{vLANE}", f"s_mov_b32 s{sT}, {WS_NRM}",
      f"buffer_load_dword v{vT2}, v{vT1}, {WSR}, s{sT} offen", f"buffer_load_dword v{vT3}, v{vT1}, {WSR}, s{sT} offen offset:256")
    for q in range(2):
        for i in range(16): e(f"v_mov_b32 v{O[q]+i}, 0")
        e(f"v_mov_b32 v{vM[q]}, 0")
    for i in range(16): e(f"v_mov_b32 v{S[1]+i}, 0")
    e(f"v_and_b32 v{vKA}, 31, v{vLANE}", f"v_cmp_eq_u32 vcc, 16, v{vKA}", f"v_mov_b32 v{vVA}, 0x3f803f80", "s_nop 0")
    for b in range(2):
        for i in range(8): e(f"v_cndmask_b32 v{V[b]+i}, 0, v{vVA}, vcc")
    e(f"v_lshlrev_b32 v{vKA}, 4, v{vLANE}",
      f"v_and_b32 v{vVA}, 15, v{vLANE}", f"v_lshlrev_b32 v{vVA}, 4, v{vVA}", f"v_lshrrev_b32 v{vT0}, 5, v{vLANE}", f"v_lshlrev_b32 v{vT0}, 8, v{vT0}",
      f"v_add_u32 v{vVA}, v{vVA}, v{vT0}", f"v_add_u32 v{vVA}, {LDS_V}, v{vVA}")
    e("s_waitcnt vmcnt(0)")
    QN = vX + 1; QT = vX + 5
    for q in range(2): e(f"v_mov_b32 v{QN+q}, 0")
    e("s_nop 0")
    for i in range(4):
        for q in range(2): e(f"v_dot2c_f32_bf16 v{QN+q}, v{Q[q]+i}, v{Q[q]+i}")
        if i == 3: e("s_nop 1")
    for q in range(2): e(f"v_mov_b32 v{QT+q}, v{QN+q}")
    e("s_nop 0")
    for q in range(2): e(f"v_permlane32_swap_b32 v{QT+q}, v{QN+q}")
    e("s_nop 0")
    for q in range(2): e(f"v_add_f32 v{QN+q}, v{QN+q}, v{QT+q}")
    e(f"v_max_f32 v{vT0}, v{QN}, v{QN+1}")
    R3 = (vT2, vT3, vT0)
    e("s_nop 0")
    for sh in (8, 4, 2, 1):
        for r in R3: e(f"v_max_f32_dpp v{r}, v{r}, v{r} row_ror:{sh} row_mask:0xf bank_mask:0xf")
    for sw in ("v_permlane16_swap_b32", "v_permlane32_swap_b32"):
        for n, r in enumerate(R3): e(f"v_mov_b32 v{QT+n}, v{r}")
        for n, r in enumerate(R3): e(f"{sw} v{QT+n}, v{r}")
        e("s_nop 0")
        for n, r in enumerate(R3): e(f"v_max_f32 v{r}, v{r}, v{QT+n}")
    e(f"v_mul_f32 v{vT0}, v{vT0}, v{vT2}", f"v_mov_b32 v{vX}, {fbits(32768.0)}",
      f"v_cmp_ge_f32 vcc, {fbits(9800.0)}, v{vT0}", f"v_cmp_ge_f32 s[{sT}:{sT+1}], v{vX}, v{vT3}", "s_nop 1", f"s_and_b64 s[{sT+2}:{sT+3}], vcc, s[{sT}:{sT+1}]")
    e("s_barrier")
    D.stamp(1)
    e(f"s_cmp_eq_u64 s[{sT+2}:{sT+3}], exec", f"s_cbranch_scc0 L_{name}_slow")
    if cfg.get('force_slow'): e(f"s_branch L_{name}_slow")
    def kv_reads(b, kt_off):
        return [f"ds_read_b128 {vr(K[b],4)}, v{vKA} offset:{kt_off*1024}", f"s_mov_b64 exec, s[{sEX}:{sEX+1}]",
                f"ds_read_b128 {vr(V[b],4)}, v{vVA} offset:{kt_off*1024}", f"ds_read_b128 {vr(V[b]+4,4)}, v{vVA} offset:{kt_off*1024+512}", "s_mov_b64 exec, -1"]
    e(kv_reads(0, 0), "s_waitcnt lgkmcnt(0)")
    e(mfma32(vr(S[0],16), vr(K[0],4), vr(Q[0],4), "0"), nops(12))
    U = 16
    e(f"s_mov_b32 s{sCNT}, {128//U}")
    A.label(f"L_{name}_Af")
    for u in range(U):
        q = u % 2; ktl = u // 2; b = ktl % 2
        Sc = S[q]; Sn = S[1-q]
        bp = b if q == 1 else 1 - b
        bn = b if q == 0 else 1 - b
        E = lambda i: f"v_exp_f32 v{Sc+i}, v{Sc+i}"
        C = lambda i: f"v_cvt_pk_bf16_f32 v{Sc+i}, v{Sc+2*i}, v{Sc+2*i+1}"
        e(E(0), E(1))
        e(mfma32(vr(O[1-q],16), vr(V[bp]+4,4), vr(Sn+4,4), vr(O[1-q],16)))
        e(E(2), E(3))
        if q == 1: e("s_waitcnt lgkmcnt(0)")
        e(E(4))
        e(mfma32(vr(Sn,16), vr(K[bn],4), vr(Q[1-q],4), "0"))
        if q == 0: e(kv_reads(1-b, ktl+1))
        e(E(5), E(6), E(7), C(0), C(1), C(2), C(3), E(8), E(9))
        e(mfma32(vr(O[q],16), vr(V[b],4), vr(Sc,4), vr(O[q],16)))
        e([E(i) for i in range(10, 16)], [C(i) for i in range(4, 8)])
    e(f"v_add_u32 v{vKA}, {U//2*1024}, v{vKA}", f"v_add_u32 v{vVA}, {U//2*1024}, v{vVA}")
    e(f"s_sub_u32 s{sCNT}, s{sCNT}, 1", f"s_cmp_eq_u32 s{sCNT}, 7", f"s_cbranch_scc1 L_{name}_Ab", f"s_cmp_eq_u32 s{sCNT}, 2", f"s_cbranch_scc1 L_{name}_Ab",
      f"s_cmp_lg_u32 s{sCNT}, 0", f"s_cbranch_scc1 L_{name}_Af", f"s_branch L_{name}_Alast")
    A.label(f"L_{name}_Ab")
    e("s_barrier", f"s_branch L_{name}_Af")
    A.label(f"L_{name}_Alast")
    e("s_nop 1", mfma32(vr(O[1],16), vr(V[1]+4,4), vr(S[1]+4,4), vr(O[1],16)))
    e(f"s_branch L_{name}_Afin")
    A.label(f"L_{name}_slow")
    for q in range(2): e(f"v_mov_b32 v{vM[q]}, {fbits(-1e30)}")
    e("s_barrier")
    e(f"s_mov_b32 s{sCNT}, 64")
    A.label(f"L_{name}_As")
    e(kv_reads(0, 0), "s_waitcnt lgkmcnt(0)")
    for q in range(2):
        Sc = S[0]
        e(mfma32(vr(Sc,16), vr(K[0],4), vr(Q[q],4), "0"), nops(14))
        e(f"v_max3_f32 v{vT0}, v{Sc}, v{Sc+1}, v{Sc+2}")
        for i in range(3, 15, 2): e(f"v_max3_f32 v{vT0}, v{Sc+i}, v{Sc+i+1}, v{vT0}")
        e(f"v_max_f32 v{vT0}, v{Sc+15}, v{vT0}", f"v_mov_b32 v{vT1}, v{vT0}", "s_nop 1", f"v_permlane32_swap_b32 v{vT1}, v{vT0}", "s_nop 1",
          f"v_max3_f32 v{vT0}, v{vT0}, v{vT1}, v{vM[q]}", f"v_sub_f32 v{vT1}, v{vM[q]}, v{vT0}", f"v_exp_f32 v{vT1}, v{vT1}", f"v_mov_b32 v{vM[q]}, v{vT0}")
        for i in range(16): e(f"v_sub_f32 v{Sc+i}, v{Sc+i}, v{vT0}")
        for i in range(16): e(f"v_exp_f32 v{Sc+i}, v{Sc+i}")
        for i in range(9): e(f"v_mul_f32 v{O[q]+i}, v{O[q]+i}, v{vT1}")
        for i in range(8): e(f"v_cvt_pk_bf16_f32 v{Sc+i}, v{Sc+2*i}, v{Sc+2*i+1}")
        e("s_nop 1", mfma32(vr(O[q],16), vr(V[0],4), vr(Sc,4), vr(O[q],16)), mfma32(vr(O[q],16), vr(V[0]+4,4), vr(Sc+4,4), vr(O[q],16)), nops(4))
    e(f"v_add_u32 v{vKA}, 1024, v{vKA}", f"v_add_u32 v{vVA}, 1024, v{vVA}", nops(10))
    e(f"s_sub_u32 s{sCNT}, s{sCNT}, 1", f"s_cmp_eq_u32 s{sCNT}, 15", f"s_cbranch_scc0 L_{name}_As2")
    e("s_barrier")
    A.label(f"L_{name}_As2")
    e(f"s_cmp_lg_u32 s{sCNT}, 0", f"s_cbranch_scc1 L_{name}_As")
    A.label(f"L_{name}_Afin")
    residual_load()
    e(nops(8))
    D.stamp(2)
    for q in range(2): e(f"v_mov_b32 v{vX+q}, v{O[q]+8}")
    e("s_nop 0")
    for q in range(2): e(f"v_permlane32_swap_b32 v{O[q]+8}, v{vX+q}")
    e("s_nop 0")
    for q in range(2): e(f"v_rcp_f32 v{O[q]+8}, v{O[q]+8}")
    e("s_nop 0")
    for q in range(2):
        for i in range(8): e(f"v_mul_f32 v{O[q]+i}, v{O[q]+i}, v{O[q]+8}")
        for p in range(4): e(f"v_cvt_pk_bf16_f32 v{O[q]+p}, v{O[q]+2*p}, v{O[q]+2*p+1}")
    e(f"s_mul_i32 s{sT+2}, s{sTBG}, 88", f"s_lshl_b32 s{sT+3}, s{sJ}, 2", f"s_add_u32 s{sT+2}, s{sT+2}, s{sT+3}", f"s_and_b32 s{sT+3}, s{sA}, 2", f"s_add_u32 s{sT+2}, s{sT+2}, s{sT+3}",
      f"s_lshl_b32 s{sT+2}, s{sT+2}, 10", f"s_add_u32 s{sT+2}, s{sT+2}, {WS_ACT}", f"v_lshlrev_b32 v{vX+2}, 4, v{vLANE}")
    for q in range(2): e(f"buffer_store_dwordx4 {vr(O[q],4)}, v{vX+2}, {WSR}, s{sT+2} offen offset:{q*1024}{SC}")
    e("s_waitcnt vmcnt(0)")
    set_flag(WS_FLO, "flo")
    D.stamp(3)
    e(f"s_branch L_{name}_red")

    A.label(f"L_{name}_B")
    ACC = 12; Z = ACC + 128; W = Z + 64
    vZO, vW0, vW1 = 6, 7, 8
    vWR = [9, 10, 11, 236]
    vB = 237
    e("s_setprio 3")
    e(f"s_lshl_b32 s{sLB}, s{sA}, 13", f"s_add_u32 s{sLB}, s{sLB}, {LDS_BOUNCE}", f"v_lshlrev_b32 v{vZO}, 4, v{vLANE}")
    e(f"s_cmp_eq_u32 s{sJ}, 7", f"s_cbranch_scc1 L_{name}_Bidle")
    sKS = sTBG
    e(f"s_lshl_b32 s{sKS}, s{sI}, 2", f"s_add_u32 s{sKS}, s{sKS}, s{sA}")
    PS = W; RAW = Z
    e(f"s_lshr_b32 s{sT}, s{sKS}, 1", f"s_lshl_b32 s{sT}, s{sT}, 12", f"s_and_b32 s{sT+1}, s{sKS}, 1", f"s_lshl_b32 s{sT+1}, s{sT+1}, 7", f"s_add_u32 s{sT}, s{sT}, s{sT+1}", f"s_add_u32 s{sT}, s{sT}, {WS_ST}",
      f"v_lshrrev_b32 v{vT1}, 4, v{vLANE}", f"v_lshlrev_b32 v{vT1}, 8, v{vT1}", f"v_and_b32 v{vT2}, 15, v{vLANE}", f"v_lshlrev_b32 v{vT2}, 3, v{vT2}", f"v_add_u32 v{vT1}, v{vT1}, v{vT2}")
    for n in range(4): e(f"buffer_load_dwordx2 {vr(PS+2*n,2)}, v{vT1}, {WSR}, s{sT} offen offset:{n*1024}")
    e(f"s_mul_i32 s{sT}, s{sKS}, 28", f"s_lshl_b32 s{sT+1}, s{sJ}, 2", f"s_add_u32 s{sT}, s{sT}, s{sT+1}", f"s_lshl_b32 s{sQO}, s{sT}, 10", f"s_add_u32 s{sT}, s{sQO}, {WS_Z2R}")
    for fb in range(4): e(f"buffer_load_dwordx4 {vr(RAW+4*fb,4)}, v{vZO}, {WSR}, s{sT} offen offset:{fb*1024}")
    e(f"v_and_b32 v{vT0}, 31, v{vLANE}", f"v_lshlrev_b32 v{vT0}, 1, v{vT0}", f"s_lshl_b32 s{sT}, s{sI}, 7")
    for tb in range(2): e(f"buffer_load_ushort v{vB+tb}, v{vT0}, s[{SRD_BSP}:{SRD_BSP+3}], s{sT} offen offset:{tb*64}")
    e(f"v_lshrrev_b32 v{vW0}, 3, v{vLANE}", f"v_lshrrev_b32 v{vT0}, 4, v{vLANE}", f"v_xor_b32 v{vT0}, v{vT0}, v{vLANE}", f"v_and_b32 v{vT0}, 7, v{vT0}", f"v_lshlrev_b32 v{vT0}, 4, v{vT0}",
      f"v_lshlrev_b32 v{vW0}, 12, v{vW0}", f"v_add_u32 v{vW0}, v{vW0}, v{vT0}",
      f"s_lshl_b32 s{sT}, s{sI}, 18", f"s_lshl_b32 s{sT+1}, s{sA}, 10", f"s_add_u32 s{sT}, s{sT}, s{sT+1}", f"v_add_u32 v{vW0}, s{sT}, v{vW0}", f"v_xor_b32 v{vW1}, 64, v{vW0}")
    e(f"v_and_b32 v{vT0}, 31, v{vLANE}", f"v_lshrrev_b32 v{vT1}, 1, v{vT0}", f"v_and_b32 v{vT1}, 7, v{vT1}", f"v_lshrrev_b32 v{vT2}, 5, v{vLANE}", f"v_xor_b32 v{vT1}, v{vT1}, v{vT2}",
      f"v_lshlrev_b32 v{vT1}, 4, v{vT1}", f"v_lshlrev_b32 v{vT0}, 7, v{vT0}", f"v_add_u32 v{vT0}, v{vT0}, v{vT1}", f"v_add_u32 v{vWR[0]}, s{sLB}, v{vT0}")
    for ks in range(1, 4): e(f"v_xor_b32 v{vWR[ks]}, {32*ks}, v{vWR[0]}")
    for i in range(128): e(f"v_mov_b32 v{ACC+i}, 0")
    if not cfg.get('preF0', 0):
        e("s_barrier")
        D.stamp(1)
    e("s_waitcnt vmcnt(6)")
    e(f"v_add_f32 v{PS}, v{PS}, v{PS+2}", f"v_add_f32 v{PS+1}, v{PS+1}, v{PS+3}", f"v_add_f32 v{PS+4}, v{PS+4}, v{PS+6}", f"v_add_f32 v{PS+5}, v{PS+5}, v{PS+7}",
      f"v_add_f32 v{PS}, v{PS}, v{PS+4}", f"v_add_f32 v{PS+1}, v{PS+1}, v{PS+5}")
    for r in (PS, PS+1):
        e(f"v_mov_b32 v{vT0}, v{r}", "s_nop 1", f"v_permlane16_swap_b32 v{vT0}, v{r}", "s_nop 1", f"v_add_f32 v{r}, v{r}, v{vT0}",
          f"v_mov_b32 v{vT0}, v{r}", "s_nop 1", f"v_permlane32_swap_b32 v{vT0}, v{r}", "s_nop 1", f"v_add_f32 v{r}, v{r}, v{vT0}")
    e(f"v_mul_f32 v{PS}, {fbits(1/896)}, v{PS}", f"v_mul_f32 v{PS+1}, {fbits(1/896)}, v{PS+1}", f"v_fma_f32 v{PS+1}, -v{PS}, v{PS}, v{PS+1}", f"v_max_f32 v{PS+1}, 0, v{PS+1}",
      f"v_add_f32 v{PS+1}, {fbits(1e-5)}, v{PS+1}", f"v_rsq_f32 v{PS+1}, v{PS+1}", "s_nop 0", f"v_mul_f32 v{PS}, v{PS}, v{PS+1}", f"v_sub_f32 v{PS}, 0, v{PS}")
    e("s_nop 1", f"v_mov_b32_dpp v{PS}, v{PS} row_ror:8 row_mask:0xc bank_mask:0xf", f"v_mov_b32_dpp v{PS+1}, v{PS+1} row_ror:8 row_mask:0xc bank_mask:0xf", "s_nop 1")
    RB = W + 8; CB = W + 16
    for jx in range(8):
        e(f"v_mov_b32_dpp v{RB+jx}, v{PS+1} row_newbcast:{jx} row_mask:0xf bank_mask:0xf", f"v_mov_b32_dpp v{CB+jx}, v{PS} row_newbcast:{jx} row_mask:0xf bank_mask:0xf")
    e("s_waitcnt vmcnt(0)")
    for tb in range(2): e(f"v_lshlrev_b32 v{vB+tb}, 16, v{vB+tb}")
    for bb in range(4):
        e(f"s_cmp_eq_u32 s{sA}, {bb}", f"s_cbranch_scc0 L_{name}_bi{bb}")
        for tb in range(2):
            for i in range(16): e(f"v_mov_b32 v{ACC + 16*(bb*2+tb) + i}, v{vB+tb}")
        A.label(f"L_{name}_bi{bb}")
    TT = W + 24
    for fb in range(4):
        for p in range(4):
            R_ = RAW + 4*fb + p
            e(f"v_lshlrev_b32 v{TT}, 16, v{R_}", f"v_and_b32 v{TT+1}, 0xffff0000, v{R_}",
              f"v_fma_f32 v{TT}, v{TT}, v{RB+2*p}, v{CB+2*p}", f"v_fma_f32 v{TT+1}, v{TT+1}, v{RB+2*p+1}, v{CB+2*p+1}",
              f"v_cvt_pk_bf16_f32 v{R_}, v{TT}, v{TT+1}")
    e(f"s_add_u32 s{sT}, s{sQO}, {WS_Z2N}")
    for fb in range(4): e(f"buffer_store_dwordx4 {vr(RAW+4*fb,4)}, v{vZO}, {WSR}, s{sT} offen offset:{fb*1024}{SC}")
    if cfg.get('preF0', 0):
        e("s_barrier")
        D.stamp(1)
    def wdma():
        o = []
        for n in range(8):
            o.append([f"s_add_u32 m0, s{sLB}, {n*1024}", f"s_add_u32 s{sT2}, s{sWOF}, {n*32768}", f"buffer_load_dwordx4 v{vW0 if n % 2 == 0 else vW1}, s[{SRD_WSP}:{SRD_WSP+3}], s{sT2} offen lds"])
        o[-1] += [f"s_add_u32 s{sWOF}, s{sWOF}, 128", f"s_min_u32 s{sWOF}, s{sWOF}, {7*128}"]
        return o
    def zload(zb, fb): return [f"buffer_load_dwordx4 {vr(Z + 16*zb + 4*fb,4)}, v{vZO}, {WSR}, s{sZ} offen offset:{fb*1024} sc1"] + ([f"s_add_u32 s{sZ}, s{sZ}, 28672"] if fb == 3 else [])
    def wread(ks, tb): return f"ds_read_b128 {vr(W + 8*ks + 4*tb, 4)}, v{vWR[ks]} offset:{tb*4096}"
    def mm(zb, fb, tb, ks): a_ = ACC + 16*(fb*2+tb); return mfma32(vr(a_,16), vr(Z+16*zb+4*fb,4), vr(W+8*ks+4*tb,4), vr(a_,16))
    e(f"s_mov_b32 s{sWOF}, 0")
    kv_fill(1)
    e("s_waitcnt vmcnt(24)")
    e(f"s_lshl_b32 s{sT}, s{sJ}, 9", f"s_lshl_b32 s{sT+1}, s{sKS}, 2", f"s_add_u32 s{sT}, s{sT}, s{sT+1}", f"s_add_u32 s{sT}, s{sT}, {WS_FLG}",
      f"v_mov_b32 v{vT0}, 0", f"v_mov_b32 v{vT1}, 1", f"buffer_store_dword v{vT1}, v{vT0}, {WSR}, s{sT} offen{FSC}")
    e(wdma())
    e("s_waitcnt vmcnt(9)", "s_barrier")
    e(f"s_lshl_b32 s{sT}, s{sJ}, 9", f"s_lshl_b32 s{sT+1}, s{sA}, 7", f"s_add_u32 s{sT}, s{sT}, s{sT+1}", f"s_add_u32 s{sT}, s{sT}, {WS_FLG}",
      f"v_and_b32 v{vT0}, 31, v{vLANE}", f"v_lshlrev_b32 v{vT0}, 2, v{vT0}")
    poll(sT, vT0, "pz")
    D.stamp(2)
    e(f"s_mul_i32 s{sZ}, s{sA}, {32*28*1024}", f"s_lshl_b32 s{sT}, s{sJ}, 12", f"s_add_u32 s{sZ}, s{sZ}, s{sT}", f"s_add_u32 s{sZ}, s{sZ}, {WS_Z2N}")
    for zb in range(4):
        for fb in range(4): e(zload(zb, fb))
    for ks in range(4):
        for tb in range(2): e(wread(ks, tb))
    e("s_waitcnt lgkmcnt(0)")
    e(wdma())
    e(f"s_mov_b32 s{sCNT}, 8", f"s_setprio {cfg.get('prioB', 0)}")
    A.label(f"L_{name}_Bl")
    for jx in range(4):
        zb = jx
        if jx < 3: e("s_waitcnt vmcnt(20)")
        else: e("s_waitcnt vmcnt(12)")
        for fb in range(4):
            e(mm(zb, fb, 0, jx), mm(zb, fb, 1, jx), zload(zb, fb))
            if jx == 3 and fb < 3: e(wread(fb, 0), wread(fb, 1))
        if jx == 3:
            e(wread(3, 0), wread(3, 1), "s_waitcnt lgkmcnt(0)", wdma())
    e(f"s_sub_u32 s{sCNT}, s{sCNT}, 1", f"s_cmp_lg_u32 s{sCNT}, 0", f"s_cbranch_scc1 L_{name}_Bl")
    e("s_setprio 3", "s_waitcnt vmcnt(0)")
    D.stamp(3)
    vZ1 = 204
    e(f"s_lshl_b32 s{sT}, s{sI}, 1", f"s_mul_i32 s{sT}, s{sT}, 28", f"s_lshl_b32 s{sT+1}, s{sJ}, 2", f"s_add_u32 s{sT}, s{sT}, s{sT+1}", f"s_add_u32 s{sT}, s{sT}, s{sA}",
      f"s_lshl_b32 s{sT}, s{sT}, 11", f"s_add_u32 s{sT}, s{sT}, {WS_Z1}", f"s_add_u32 s{sT+1}, s{sT}, {28*2048}")
    for tb in range(2):
        for m in range(2): e(f"buffer_load_dwordx4 {vr(vZ1 + 8*tb + 4*m,4)}, v{vZO}, {WSR}, s{sT+tb} offen offset:{m*1024}")
    e(f"v_lshlrev_b32 v{vT0}, 4, v{vLANE}")
    ACC3 = 12; AF = 76; WF = 188
    vWG = 7
    sXB, sBASE, sACT = 45, sT+2, sT+4
    sWBA, sWBO = 46, 47
    NA, NO = 14, 8
    def p3_setup():
        e(f"s_mul_i32 s{sWBA}, s{sA}, {14*16384}", f"s_lshl_b32 s{sWBO}, s{sA}, 17")
        e(f"s_and_b32 s{sT}, s{sA}, 1", f"s_mul_i32 s{sXB}, s{sT}, 24576", f"s_lshr_b32 s{sT}, s{sA}, 1", f"s_lshl_b32 s{sT}, s{sT}, 16", f"s_add_u32 s{sXB}, s{sXB}, s{sT}")
        e(f"v_lshrrev_b32 v{vWG}, 3, v{vLANE}", f"v_lshlrev_b32 v{vWG}, 10, v{vWG}", f"v_bfe_u32 v{vT1}, v{vLANE}, 4, 1", f"v_lshlrev_b32 v{vT1}, 2, v{vT1}", f"v_xor_b32 v{vT1}, v{vT1}, v{vLANE}",
          f"v_and_b32 v{vT1}, 7, v{vT1}", f"v_lshlrev_b32 v{vT1}, 4, v{vT1}", f"v_add_u32 v{vWG}, v{vWG}, v{vT1}", f"s_lshl_b32 s{sT}, s{sJ}, 7", f"v_add_u32 v{vWG}, s{sT}, v{vWG}")
    def slot_addr(slot):
        return (sXB, slot*2048) if slot < 12 else (sLB, (slot-12)*2048)
    def w3dma(ptr, rowstep_s, st, nper, slot):
        sb, off = slot_addr(slot)
        base = sWBA if nper == NA else sWBO
        return [f"s_add_u32 m0, s{sb}, {off}", f"s_add_u32 s{sBASE}, s{base}, {st*16384}", f"buffer_load_dwordx4 v{vWG}, s[{ptr}:{ptr+3}], s{sBASE} offen lds",
                f"s_add_u32 m0, s{sb}, {off + 1024}", f"s_add_u32 s{sBASE}, s{base}, {st*16384 + 8192}", f"buffer_load_dwordx4 v{vWG}, s[{ptr}:{ptr+3}], s{sBASE} offen lds"]
    def w3_all():
        return [w3dma(SRD_WOUT, None, st, NA, st) for st in range(NA)] + [w3dma(SRD_WO, None, st, NO, 14 + st) for st in range(2)]
    p3_setup()
    for g in w3_all()[12:]: e(g)
    e("s_barrier")
    for bb in range(4):
        e(f"s_cmp_eq_u32 s{sA}, {bb}", f"s_cbranch_scc0 L_{name}_Bs{bb}")
        for d in range(4):
            if d == bb: continue
            pos = (bb - d - 1) & 3
            base = XREG[d] + pos*8192
            e(f"v_add_u32 v{vT1}, {base}, v{vT0}" if base else f"v_mov_b32 v{vT1}, v{vT0}")
            for tb in range(2):
                for g in range(4): e(f"ds_write_b128 v{vT1}, {vr(ACC + 16*(d*2+tb) + 4*g, 4)} offset:{tb*4096 + g*1024}")
        e("s_waitcnt lgkmcnt(0)", f"v_mov_b32 v{vT2}, {XFLAG + 4*bb}", f"v_mov_b32 v{vT3}, {XMAGIC}", f"ds_write_b32 v{vT2}, v{vT3}",
          f"v_and_b32 v{vT2}, 3, v{vLANE}", f"v_lshlrev_b32 v{vT2}, 2, v{vT2}", f"v_add_u32 v{vT2}, {XFLAG}, v{vT2}", f"s_mov_b32 s{sCNT}, {SPIN_MAX}", f"s_mov_b32 s{sT}, {XMAGIC}")
        A.label(f"L_{name}_hs{bb}")
        e(f"ds_read_b32 v{vT1}, v{vT2}", "s_waitcnt lgkmcnt(0)", f"v_cmp_ne_u32 vcc, s{sT}, v{vT1}", f"s_sub_u32 s{sCNT}, s{sCNT}, 1",
          f"s_cbranch_vccz L_{name}_hs{bb}ok", f"s_cmp_eq_u32 s{sCNT}, 0", f"s_cbranch_scc0 L_{name}_hs{bb}")
        A.label(f"L_{name}_hs{bb}ok")
        e(f"v_add_u32 v{vT1}, {XREG[bb]}, v{vT0}" if XREG[bb] else f"v_mov_b32 v{vT1}, v{vT0}")
        others = [ACC + 16*(d*2+t) for d in range(4) if d != bb for t in range(2)]
        XB = [[Z, Z+16, Z+32], others[:3]]
        for tb in range(2):
            for pos in range(3):
                for g in range(4): e(f"ds_read_b128 {vr(XB[tb][pos]+4*g,4)}, v{vT1} offset:{pos*8192 + tb*4096 + g*1024}")
            if tb == 0: e("s_waitcnt lgkmcnt(0)")
        e("s_waitcnt lgkmcnt(0) vmcnt(0)")
        dm = w3_all()[:12]
        T0 = others[3]
        for tb in range(2):
            a_ = ACC + 16*(bb*2+tb)
            for pos in range(3):
                for i in range(16): e(f"v_add_f32 v{a_+i}, v{a_+i}, v{XB[tb][pos]+i}")
                e(dm.pop(0))
            for p in range(8):
                zr = vZ1 + 8*tb + p
                e(f"v_lshlrev_b32 v{T0}, 16, v{zr}", f"v_and_b32 v{T0+1}, 0xffff0000, v{zr}", f"v_mul_f32 v{T0}, v{T0}, v{a_+2*p}", f"v_mul_f32 v{T0+1}, v{T0+1}, v{a_+2*p+1}",
                  f"v_cvt_pk_bf16_f32 v{zr}, v{T0}, v{T0+1}")
                if p in (2, 4, 6): e(dm.pop(0))
        assert not dm
        for tb in range(2):
            e(f"s_lshl_b32 s{sT}, s{sI}, 1", f"s_add_u32 s{sT}, s{sT}, {tb}", f"s_mul_i32 s{sT}, s{sT}, 88", f"s_lshl_b32 s{sT+1}, s{sJ}, 3", f"s_add_u32 s{sT}, s{sT}, s{sT+1}",
              f"s_add_u32 s{sT}, s{sT}, {32 + 2*bb}", f"s_lshl_b32 s{sT}, s{sT}, 10", f"s_add_u32 s{sT}, s{sT}, {WS_ACT}")
            for m in range(2): e(f"buffer_store_dwordx4 {vr(vZ1 + 8*tb + 4*m,4)}, v{vZO}, {WSR}, s{sT} offen offset:{m*1024}{SC}")
        e(f"s_branch L_{name}_P3")
        A.label(f"L_{name}_Bs{bb}")
    e(f"s_branch L_{name}_P3")
    A.label(f"L_{name}_Bidle")
    e("s_barrier")
    kv_fill(1)
    p3_setup()
    for g in w3_all()[12:]: e(g)
    e("s_waitcnt vmcnt(0)", "s_barrier", "s_barrier")
    for g in w3_all()[:12]: e(g)

    A.label(f"L_{name}_P3")
    D.stamp(4)
    vWR0, vWR1 = 8, 9
    residual_load()
    e("s_waitcnt vmcnt(0)")
    set_flag(WS_FLA, "fla")
    D.stamp(5)
    vWB = 10
    e(f"v_lshrrev_b32 v{vWB}, 5, v{vLANE}", f"v_lshlrev_b32 v{vWB}, 2, v{vWB}", f"v_bfe_u32 v{vT0}, v{vLANE}, 2, 2", f"v_add_u32 v{vWB}, v{vWB}, v{vT0}", f"v_lshlrev_b32 v{vWB}, 7, v{vWB}",
      f"v_bfe_u32 v{vT0}, v{vLANE}, 3, 1", f"v_lshlrev_b32 v{vT0}, 6, v{vT0}", f"v_add_u32 v{vWB}, v{vWB}, v{vT0}",
      f"v_bfe_u32 v{vT0}, v{vLANE}, 4, 1", f"v_lshlrev_b32 v{vT0}, 5, v{vT0}", f"v_add_u32 v{vWB}, v{vWB}, v{vT0}", f"v_and_b32 v{vT0}, 3, v{vLANE}", f"v_lshlrev_b32 v{vT0}, 3, v{vT0}",
      f"v_add_u32 v{vWB}, v{vWB}, v{vT0}")
    vRX = [vWR0, vWR1]; vRB = [11, 236]
    e(f"v_add_u32 v{vRX[0]}, s{sXB}, v{vWB}", f"v_xor_b32 v{vRX[1]}, 64, v{vRX[0]}", f"v_add_u32 v{vRB[0]}, s{sLB}, v{vWB}", f"v_xor_b32 v{vRB[1]}, 64, v{vRB[0]}")
    e(f"s_lshl_b32 s{sT2}, s{sI}, 10", f"s_add_u32 s{sT2}, s{sT2}, {WS_FLA}",
      f"v_and_b32 v{vT2}, 31, v{vLANE}", f"v_lshrrev_b32 v{vT3}, 2, v{vT2}", f"v_lshlrev_b32 v{vT3}, 7, v{vT3}", f"v_and_b32 v{vT2}, 3, v{vT2}", f"v_lshlrev_b32 v{vT2}, 2, v{vT2}", f"v_add_u32 v{vT3}, v{vT3}, v{vT2}")
    poll(sT2, vT3, "pa")
    D.stamp(6)
    e(f"s_lshl_b32 s{sT}, s{sI}, 1", f"s_mul_i32 s{sT}, s{sT}, 88", f"s_lshl_b32 s{sT}, s{sT}, 10", f"s_add_u32 s{sACT}, s{sT}, {WS_ACT}")
    def act_loads(ks0_expr, n):
        for st in range(n):
            e(f"s_add_u32 s{sT}, s{sT+5}, {st*1024}", f"buffer_load_dwordx4 {vr(AF + 8*st, 4)}, v{vZO}, {WSR}, s{sT} offen sc1",
              f"s_add_u32 s{sT}, s{sT}, {88*1024}", f"buffer_load_dwordx4 {vr(AF + 8*st + 4, 4)}, v{vZO}, {WSR}, s{sT} offen sc1")
    def wreads(slot, buf):
        sb, off = slot_addr(slot)
        ad = vRX if slot < 12 else vRB
        return [f"ds_read_b64_tr_b16 {vr(WF + 8*buf + 4*nb + 2*hf, 2)}, v{ad[nb]} offset:{off + hf*1024}" for nb in range(2) for hf in range(2)]
    def gemm(n, slots, after, first=False):
        ndma = 0
        e(wreads(slots[0], 0))
        for st in range(n):
            buf = st % 2
            e(f"s_waitcnt vmcnt({2*(n-1-st) + ndma})")
            if st + 1 < n: e(wreads(slots[st+1], 1-buf), "s_waitcnt lgkmcnt(4)")
            else: e("s_waitcnt lgkmcnt(0)")
            for nb in range(2):
                for tb in range(2):
                    a_ = ACC3 + 16*(nb*2+tb)
                    e(mfma32(vr(a_,16), vr(WF + 8*buf + 4*nb, 4), vr(AF + 8*st + 4*tb, 4), "0" if (first and st == 0) else vr(a_,16)))
            x = after(st)
            if x: e(x); ndma += 2
    e(f"s_mul_i32 s{sT+5}, s{sA}, {NA*1024}", f"s_add_u32 s{sT+5}, s{sT+5}, {32*1024}", f"s_add_u32 s{sT+5}, s{sT+5}, s{sACT}")
    act_loads(None, NA)
    gemm(NA, list(range(NA)), lambda st: w3dma(SRD_WO, None, st + 2, NO, st) if st < NO - 2 else None, first=True)
    D.stamp(7)
    e(f"s_lshl_b32 s{sT2}, s{sI}, 10", f"s_add_u32 s{sT2}, s{sT2}, {WS_FLO}")
    poll(sT2, vT3, "po")
    D.stamp(8)
    e(f"s_mul_i32 s{sT+5}, s{sA}, {NO*1024}", f"s_add_u32 s{sT+5}, s{sT+5}, s{sACT}")
    act_loads(None, NO)
    gemm(NO, [14, 15, 0, 1, 2, 3, 4, 5], lambda st: None)
    e(nops(12))
    D.stamp(9)
    RS = 272
    e(f"v_and_b32 v{vT0}, 31, v{vLANE}", f"v_mul_u32_u24 v{vT0}, {RS}, v{vT0}", f"v_lshrrev_b32 v{vT1}, 5, v{vLANE}", f"v_lshlrev_b32 v{vT1}, 4, v{vT1}", f"v_add_u32 v{vT0}, v{vT0}, v{vT1}",
      f"v_add_u32 v{vT0}, s{sXB}, v{vT0}")
    for nb in range(2):
        for tb in range(2):
            for g in range(4): e(f"ds_write_b128 v{vT0}, {vr(ACC3 + 16*(nb*2+tb) + 4*g, 4)} offset:{tb*32*RS + nb*128 + g*32}")
    A.label(f"L_{name}_red")
    e("s_setprio 0")
    e(f"v_lshrrev_b32 v{vT0}, 3, v0", f"v_mul_u32_u24 v{vT0}, {RS}, v{vT0}", f"v_and_b32 v{vT1}, 7, v0", f"v_lshlrev_b32 v{vT1}, 5, v{vT1}", f"v_add_u32 v{vT0}, v{vT0}, v{vT1}",
      f"v_add_u32 v{vT1}, {XREG[2]}, v{vT0}")
    e("s_waitcnt lgkmcnt(0)", "s_barrier")
    R0 = 76
    for w in range(4):
        ad = vT0 if w < 2 else vT1
        for g in range(2): e(f"ds_read_b128 {vr(R0 + 8*w + 4*g, 4)}, v{ad} offset:{(w % 2)*24576 + g*16}")
    e("s_waitcnt lgkmcnt(0) vmcnt(0)")
    for d in (16, 8):
        for p in range(d // 2): e(f"v_pk_add_f32 {vr(R0+2*p,2)}, {vr(R0+2*p,2)}, {vr(R0+d+2*p,2)}")
    for p in range(4):
        xr = XR + p
        e(f"v_lshlrev_b32 v{vT0}, 16, v{xr}", f"v_and_b32 v{vT1}, 0xffff0000, v{xr}", f"v_add_f32 v{vT0}, v{vT0}, v{R0+2*p}", f"v_add_f32 v{vT1}, v{vT1}, v{R0+2*p+1}",
          f"v_cvt_pk_bf16_f32 v{xr}, v{vT0}, v{vT1}")
    e(f"buffer_store_dwordx4 {vr(XR,4)}, v{vOUT}, s[{SRD_OUT}:{SRD_OUT+3}], 0 offen{cfg.get('osc', ' sc1')}")
    D.stamp(10)
    e("s_waitcnt vmcnt(0)")
    D.stamp(11)
    D.flush(4, sW)
    A.label(f"L_{name}_end")
    e("s_endpgm")
    return kernel_head(name) + A.text() + KD.format(name=name, vgpr=256, sgpr=100, acc=256)
```

```python
from asmlib import *
from p1 import gen_p1
from p23 import gen_p23
def final_asm(cfg=None):
    cfg = cfg or {}
    d = cfg.get('diag')
    s = "; generated by gen/final.py : two launches (projections | attention + spatial gating + output projection)\n"
    s += "; @launch kernel=p1_kernel grid=(256,1,1) block=(512,1,1) lds=153600\n"
    s += "; @launch kernel=p23_kernel grid=(256,1,1) block=(512,1,1) lds=163840\n"
    s += '.amdgcn_target "amdgcn-amd-amdhsa--gfx950"\n'
    s += gen_p1('p1_kernel', dict(cfg.get('p1') or {}, diag=d)) + gen_p23('p23_kernel', dict(cfg.get('p23') or {}, diag=d))
    return s
if __name__ == '__main__':
    import sys
    out = sys.argv[1] if len(sys.argv) > 1 else 'parallel_sum__grouped_kv_mqa__mixer_gmlp__prompt.s'
    open(out, 'w').write(final_asm())
    print('written', out)
```
